```python
import torch

def _softmax(x, axis=-1):
    return torch.softmax(x, dim=axis)
def _gelu(x):
    return torch.nn.functional.gelu(x, approximate="tanh")
def _silu(x):
    return torch.nn.functional.silu(x)
def _sigmoid(x):
    return torch.sigmoid(x)
def _layernorm(x, axis=-1, eps=1e-5):
    m = x.mean(dim=axis, keepdim=True)
    v = x.var(dim=axis, keepdim=True, unbiased=False)
    return (x - m) / torch.sqrt(v + eps)
def _scatter_add(tgt, idx, src, axis=0):
    return tgt.clone().index_add_(axis, idx, src)
def _segment_sum(src, seg, n):
    out = torch.zeros((n,) + src.shape[1:], dtype=src.dtype)
    return out.index_add_(0, seg, src)
def _pad(x, pw):
    flat = tuple(v for pair in reversed(pw) for v in pair)
    return torch.nn.functional.pad(x, flat)

kernel_name = 'gated_mix__ssm_conv_s4d__dense_activation_silu__prompt'

def setup_inputs():

    _w = (lambda a: (lambda t: t.to(torch.bfloat16) if t.is_floating_point() else t)(torch.as_tensor(a)))
    def _A_setup():
        Bsz, L, D, N = 1, 2048, 640, 128
        return {
            "u": _w((lambda *s: torch.randn(*s, dtype=torch.bfloat16) * 0.05)(Bsz, L, D)),
            "log_A_real": _w((lambda *s: torch.randn(*s, dtype=torch.bfloat16) * 3.2)(D, N) * 0.5),
            "A_imag": _w((lambda *s: torch.randn(*s, dtype=torch.bfloat16) * 0.05)(D, N) * 3.14),
            "C_real": _w((lambda *s: torch.randn(*s, dtype=torch.bfloat16) * 0.1)(D, N) / N ** 0.5),
            "C_imag": _w((lambda *s: torch.randn(*s, dtype=torch.bfloat16) * 0.1)(D, N) / N ** 0.5),
            "log_dt": _w((lambda *s: torch.randn(*s, dtype=torch.bfloat16) * 0.05)(D) * 0.5 - 4.0),
            "D_skip": _w((lambda *s: torch.randn(*s, dtype=torch.bfloat16) * 0.05)(D)),
        }
    _A_in = _A_setup()

    def _B_setup():
        B, S, D, F = 1, 2048, 640, 1728
        return {
            "x": _w((lambda *s: torch.randn(*s, dtype=torch.bfloat16) * 0.05)(B, S, D)),
            "w1": _w((lambda *s: torch.randn(*s, dtype=torch.bfloat16) * 3.2)(D, F) * (D ** -0.5)),
            "w2": _w((lambda *s: torch.randn(*s, dtype=torch.bfloat16) * 0.1)(F, D) * (F ** -0.5)),
        }
    _B_in = _B_setup()

    return {
        "A_u": _A_in["u"],
        "A_log_A_real": _A_in["log_A_real"],
        "A_A_imag": _A_in["A_imag"],
        "A_C_real": _A_in["C_real"],
        "A_C_imag": _A_in["C_imag"],
        "A_log_dt": _A_in["log_dt"],
        "A_D_skip": _A_in["D_skip"],
        "B_x": _B_in["x"],
        "B_w1": _B_in["w1"],
        "B_w2": _B_in["w2"],
        "gate_w": _w((lambda *s: torch.randn(*s, dtype=torch.bfloat16) * 0.05)(640) * 16.0),
    }

def reference(A_u, A_log_A_real, A_A_imag, A_C_real, A_C_imag, A_log_dt, A_D_skip, B_x, B_w1, B_w2, gate_w):
    def _A_ref(u, log_A_real, A_imag, C_real, C_imag, log_dt, D_skip):
        L = u.shape[1]
        dt = torch.exp(log_dt)
        A = -torch.exp(log_A_real) + 1j * A_imag
        C = (C_real + 1j * C_imag) * dt[:, None]
        pos = (lambda x, dt: x.to(dt))(torch.arange(L), log_dt.dtype)
        P = torch.exp((A * dt[:, None])[:, :, None] * pos[None, None, :])
        K = 2.0 * torch.einsum("dn,dnl->dl", C, P).real
        L2 = 2 * L
        u_t = (lambda x, *d: x.permute(*d))(u, 0, 2, 1)
        Kf = (lambda x, *a, **k: torch.fft.rfft(x.float(), *a, **k))(K, L2)
        Uf = (lambda x, *a, **k: torch.fft.rfft(x.float(), *a, **k))(u_t, L2)
        y = (lambda x, *a, **k: torch.fft.irfft(x, *a, **k).to(torch.bfloat16))(Uf * Kf[None, :, :], L2)[:, :, :L]
        y = (lambda x, *d: x.permute(*d))(y, 0, 2, 1)
        return y + u * D_skip[None, None, :]

    def _B_ref(x, w1, w2):
        h = torch.einsum("bsd,df->bsf", x, w1)
        h = _silu(h)
        out = torch.einsum("bsf,fd->bsd", h, w2)
        return out

    x = A_u
    g = _sigmoid((x * gate_w).sum(-1, keepdims=True))
    a = _A_ref(x, A_log_A_real, A_A_imag, A_C_real, A_C_imag, A_log_dt, A_D_skip)
    b = _B_ref(x, B_w1, B_w2)
    return g * a + (1 - g) * b
```

```python
L, D, N, F = 2048, 640, 128, 1728
OFF_H   = 0
SZ_H    = L * F * 2
OFF_AT  = 0x700000
SZ_AT   = D * L * 2
OFF_W2T = 0xA00000
SZ_W2T  = D * F * 2
OFF_G   = 0xD00000
SZ_G    = L * 4
KA = dict(u=0, lar=8, aim=16, cre=24, cim=32, ldt=40, dsk=48, bx=56, w1=64, w2=72, gw=80, out=88, dbg=96, ws=104)

class Asm:
    def __init__(self):
        self.lines = []
        self.uid = 0
    def __call__(self, s):
        for ln in s.strip("\n").split("\n"):
            self.lines.append("    " + ln.strip())
    def label(self, name):
        self.lines.append(name + ":")
    def newlabel(self, base="L"):
        self.uid += 1
        return f"{base}_{self.uid}"
    def comment(self, s):
        self.lines.append("    ; " + s)
    def text(self):
        return "\n".join(self.lines) + "\n"

def srd(a, dst, ptr, off, size, tmp=None):
    if off:
        a(f"s_add_u32 s{dst}, s{ptr}, {off}")
        a(f"s_addc_u32 s{dst+1}, s{ptr+1}, 0")
    else:
        a(f"s_mov_b32 s{dst}, s{ptr}")
        a(f"s_mov_b32 s{dst+1}, s{ptr+1}")
    a(f"s_mov_b32 s{dst+2}, {size}")
    a(f"s_mov_b32 s{dst+3}, 0x00020000")

def kdesc(name, vgpr, sgpr=96, accum=None):
    if accum is None:
        accum = (vgpr + 3) // 4 * 4
    return f""".amdhsa_kernel {name}
  .amdhsa_next_free_vgpr {vgpr}
  .amdhsa_next_free_sgpr {sgpr}
  .amdhsa_accum_offset {accum}
  .amdhsa_group_segment_fixed_size 0
  .amdhsa_kernarg_size 112
  .amdhsa_user_sgpr_count 2
  .amdhsa_user_sgpr_kernarg_segment_ptr 1
  .amdhsa_system_sgpr_workgroup_id_x 1
.end_amdhsa_kernel
"""
```

```python
from common import *
import k1_gemm1, k1_misc, k1_ssm

N_SSM = 640
N_G1 = 288
N_MISC = 270
K1_GRID = N_SSM + N_G1 + N_MISC
K1_LDS = 65536
K1_VGPR = 256

def gen_k1(a):
    a.label("k1_kernel")
    a(f"""
    s_cmp_ge_u32 s2, {K1_GRID}
    s_cbranch_scc1 k1_end
    s_cmp_lt_u32 s2, {N_SSM}
    s_cbranch_scc1 k1_ssm
    s_cmp_lt_u32 s2, {N_SSM + N_G1}
    s_cbranch_scc1 k1_gemm1
    s_branch k1_misc
    """)
    a.label("k1_gemm1")
    k1_gemm1.gen(a, N_SSM)
    a.label("k1_misc")
    k1_misc.gen(a, N_SSM + N_G1)
    a.label("k1_ssm")
    k1_ssm.gen(a)
    a.label("k1_end")
    a("s_endpgm")
```

```python
from common import *

def gen(a, base_id):
    ACC = 16
    XR = 64
    WR = 128
    AF = 152
    def acc(tf): return ACC + 16*tf
    def xr(buf, ks): return XR + 32*buf + 4*ks
    def af(b, tf): return AF + 12*b + 4*tf
    a(f"""
    s_load_dwordx2 s[4:5], s[0:1], {KA['u']}
    s_load_dwordx2 s[6:7], s[0:1], {KA['w1']}
    s_load_dwordx2 s[8:9], s[0:1], {KA['ws']}
    v_lshrrev_b32 v7, 6, v0
    v_and_b32 v1, 63, v0
    v_and_b32 v2, 15, v1
    v_lshrrev_b32 v3, 4, v1
    v_lshrrev_b32 v4, 5, v1
    v_and_b32 v5, 31, v1
    v_readfirstlane_b32 s10, v7
    s_sub_u32 s11, s2, {base_id}
    ; ltile = s11 / 18 ; ft = s11 % 18
    s_mul_i32 s12, s11, 3641
    s_lshr_b32 s12, s12, 16
    s_mul_i32 s13, s12, 18
    s_sub_u32 s11, s11, s13
    v_lshrrev_b32 v6, 2, v2
    v_lshl_add_u32 v6, v4, 3, v6
    v_mul_u32_u24 v6, 192, v6
    v_and_b32 v7, 1, v3
    v_lshl_add_u32 v6, v7, 5, v6
    v_and_b32 v7, 3, v2
    v_lshl_add_u32 v6, v7, 3, v6
    v_mul_u32_u24 v15, 1280, v5
    v_lshl_add_u32 v15, v4, 4, v15
    v_lshlrev_b32 v14, 4, v0
    """)
    for s6 in range(6):
        a(f"""
        v_add_u32 v7, {256*s6}, v0
        v_mul_u32_u24 v{8+s6}, 43691, v7
        v_lshrrev_b32 v{8+s6}, 19, v{8+s6}
        v_mul_u32_u24 v16, 12, v{8+s6}
        v_sub_u32 v16, v7, v16
        v_mul_u32_u24 v{8+s6}, 0xd80, v{8+s6}
        v_lshl_add_u32 v{8+s6}, v16, 4, v{8+s6}
        """)
    a(f"""
    s_lshl_b32 s13, s12, 7
    s_lshl_b32 s14, s10, 5
    s_add_u32 s13, s13, s14
    s_mul_i32 s13, s13, 1280
    s_mul_i32 s14, s11, 192           ; f0*2
    s_waitcnt lgkmcnt(0)
    """)
    srd(a, 16, 4, 0, L*D*2)
    srd(a, 20, 6, 0, D*F*2)
    srd(a, 24, 8, OFF_H, SZ_H)
    for r in range(48):
        a(f"v_mov_b32 v{ACC+r}, 0")
    def load(c):
        for ks in range(8):
            a(f"buffer_load_dwordx4 v[{xr(c%2,ks)}:{xr(c%2,ks)+3}], v15, s[16:19], s13 offen offset:{c*256+ks*32}")
        a(f"s_add_u32 s15, s14, {c*442368}")
        for s6 in range(6):
            a(f"buffer_load_dwordx4 v[{WR+4*s6}:{WR+4*s6+3}], v{8+s6}, s[20:23], s15 offen")
    def stage(c):
        a("s_waitcnt vmcnt(0)")
        for s6 in range(6):
            a(f"ds_write_b128 v14, v[{WR+4*s6}:{WR+4*s6+3}] offset:{(c%2)*24576 + s6*4096}")
        a("s_waitcnt lgkmcnt(0)")
        a("s_barrier")
    def reads(c, ks):
        b = ks % 2
        for tf in range(3):
            off = (c%2)*24576 + ks*3072 + tf*64
            a(f"ds_read_b64_tr_b16 v[{af(b,tf)}:{af(b,tf)+1}], v6 offset:{off}")
            a(f"ds_read_b64_tr_b16 v[{af(b,tf)+2}:{af(b,tf)+3}], v6 offset:{off+768}")
    load(0); stage(0)
    for c in range(5):
        if c < 4: load(c+1)
        reads(c, 0)
        for ks in range(8):
            if ks < 7:
                reads(c, ks+1)
                a("s_waitcnt lgkmcnt(6)")
            else:
                a("s_waitcnt lgkmcnt(0)")
            for tf in range(3):
                a(f"v_mfma_f32_32x32x16_bf16 v[{acc(tf)}:{acc(tf)+15}], v[{af(ks%2,tf)}:{af(ks%2,tf)+3}], v[{xr(c%2,ks)}:{xr(c%2,ks)+3}], v[{acc(tf)}:{acc(tf)+15}]")
        if c < 4: stage(c+1)
    a(f"""
    s_lshl_b32 s13, s12, 7
    s_lshl_b32 s15, s10, 5
    s_add_u32 s13, s13, s15
    v_add_u32 v7, s13, v5
    v_mul_u32_u24 v7, 0xd80, v7
    v_add_u32 v7, s14, v7
    v_lshl_add_u32 v7, v4, 3, v7
    s_mov_b32 s15, 0xbfb8aa3b      ; -log2(e)
    s_nop 7
    s_nop 7
    """)
    T = 64
    for tf in range(3):
        for k4 in range(4):
            r0 = acc(tf) + 4*k4
            a(f"""
            v_cvt_pk_bf16_f32 v{T}, v{r0}, v{r0+1}
            v_cvt_pk_bf16_f32 v{T+1}, v{r0+2}, v{r0+3}
            v_lshlrev_b32 v{T+2}, 16, v{T}
            v_and_b32 v{T+3}, 0xffff0000, v{T}
            v_lshlrev_b32 v{T+4}, 16, v{T+1}
            v_and_b32 v{T+5}, 0xffff0000, v{T+1}
            v_mul_f32 v{T+6}, s15, v{T+2}
            v_mul_f32 v{T+7}, s15, v{T+3}
            v_mul_f32 v{T+8}, s15, v{T+4}
            v_mul_f32 v{T+9}, s15, v{T+5}
            v_exp_f32 v{T+6}, v{T+6}
            v_exp_f32 v{T+7}, v{T+7}
            v_exp_f32 v{T+8}, v{T+8}
            v_exp_f32 v{T+9}, v{T+9}
            v_add_f32 v{T+6}, 1.0, v{T+6}
            v_add_f32 v{T+7}, 1.0, v{T+7}
            v_add_f32 v{T+8}, 1.0, v{T+8}
            v_add_f32 v{T+9}, 1.0, v{T+9}
            v_rcp_f32 v{T+6}, v{T+6}
            v_rcp_f32 v{T+7}, v{T+7}
            v_rcp_f32 v{T+8}, v{T+8}
            v_rcp_f32 v{T+9}, v{T+9}
            v_mul_f32 v{T+2}, v{T+2}, v{T+6}
            v_mul_f32 v{T+3}, v{T+3}, v{T+7}
            v_mul_f32 v{T+4}, v{T+4}, v{T+8}
            v_mul_f32 v{T+5}, v{T+5}, v{T+9}
            v_cvt_pk_bf16_f32 v{T+10}, v{T+2}, v{T+3}
            v_cvt_pk_bf16_f32 v{T+11}, v{T+4}, v{T+5}
            buffer_store_dwordx2 v[{T+10}:{T+11}], v7, s[24:27], 0 offen offset:{tf*64 + k4*16}
            """)
    a("s_waitcnt vmcnt(0)")
    a("s_endpgm")
```

```python
from common import *
def gen(a, base_id):
    a(f"""
    s_load_dwordx2 s[4:5], s[0:1], {KA['w2']}
    s_load_dwordx2 s[6:7], s[0:1], {KA['ws']}
    s_load_dwordx2 s[8:9], s[0:1], {KA['u']}
    s_load_dwordx2 s[10:11], s[0:1], {KA['gw']}
    v_lshrrev_b32 v7, 6, v0
    v_and_b32 v1, 63, v0
    v_readfirstlane_b32 s12, v7
    s_sub_u32 s13, s2, {base_id}          ; mi
    s_mul_i32 s14, s13, 6554
    s_lshr_b32 s14, s14, 16
    s_mul_i32 s15, s14, 10
    s_sub_u32 s15, s13, s15               ; dtile
    s_waitcnt lgkmcnt(0)
    """)
    srd(a, 16, 4, 0, F*D*2)
    srd(a, 20, 6, OFF_W2T, SZ_W2T)
    srd(a, 24, 8, 0, L*D*2)
    srd(a, 28, 10, 0, D*2)
    srd(a, 32, 6, OFF_G, SZ_G)
    a(f"""
    v_lshrrev_b32 v2, 3, v0
    v_and_b32 v3, 7, v0
    v_mul_u32_u24 v4, 1280, v2
    v_lshl_add_u32 v4, v3, 4, v4
    s_mul_i32 s36, s14, {64*1280}
    s_lshl_b32 s37, s15, 7
    s_add_u32 s36, s36, s37
    s_add_u32 s37, s36, {32*1280}
    buffer_load_dwordx4 v[8:11], v4, s[16:19], s36 offen
    buffer_load_dwordx4 v[12:15], v4, s[16:19], s37 offen
    v_mul_u32_u24 v5, 144, v2
    v_lshl_add_u32 v5, v3, 4, v5
    s_waitcnt vmcnt(0)
    ds_write_b128 v5, v[8:11]
    ds_write_b128 v5, v[12:15] offset:{32*144}
    s_waitcnt lgkmcnt(0)
    s_barrier
    ; tr reads: group g = lane/16, i = lane%16 ; row = 16g + i/4 ; col = 16w + 4(i%4)
    v_and_b32 v2, 15, v1
    v_lshrrev_b32 v3, 4, v1
    v_lshrrev_b32 v6, 2, v2
    v_lshl_add_u32 v6, v3, 4, v6
    v_mul_u32_u24 v6, 144, v6
    v_and_b32 v7, 3, v2
    v_lshl_add_u32 v6, v7, 3, v6
    s_lshl_b32 s38, s12, 5
    v_add_u32 v6, s38, v6
    ds_read_b64_tr_b16 v[8:9], v6
    ds_read_b64_tr_b16 v[10:11], v6 offset:{4*144}
    ds_read_b64_tr_b16 v[12:13], v6 offset:{8*144}
    ds_read_b64_tr_b16 v[14:15], v6 offset:{12*144}
    s_lshl_b32 s38, s15, 6
    s_lshl_b32 s39, s12, 4
    s_add_u32 s38, s38, s39
    v_add_u32 v7, s38, v2
    v_mul_u32_u24 v7, 0xd80, v7
    v_lshl_add_u32 v7, v3, 5, v7
    s_lshl_b32 s38, s14, 7
    s_waitcnt lgkmcnt(0)
    buffer_store_dwordx4 v[8:11], v7, s[20:23], s38 offen
    buffer_store_dwordx4 v[12:15], v7, s[20:23], s38 offen offset:16
    s_cmp_ge_u32 s13, 256
    s_cbranch_scc1 k1_misc_done
    s_lshl_b32 s38, s13, 3
    s_lshl_b32 s39, s12, 1
    s_add_u32 s38, s38, s39               ; row0
    s_mul_i32 s39, s38, 1280
    v_lshlrev_b32 v2, 2, v1
    """)
    for k in range(5):
        a(f"buffer_load_dword v{16+k}, v2, s[28:31], 0 offen offset:{k*256}")
    for rr in range(2):
        for k in range(5):
            a(f"buffer_load_dword v{24+rr*5+k}, v2, s[24:27], s39 offen offset:{rr*1280 + k*256}")
    a("s_waitcnt vmcnt(0)")
    for k in range(5):
        a(f"v_lshlrev_b32 v{40+2*k}, 16, v{16+k}")
        a(f"v_and_b32 v{41+2*k}, 0xffff0000, v{16+k}")
    for rr in range(2):
        S = 60 + rr
        a(f"v_mov_b32 v{S}, 0")
        for k in range(5):
            x = 24 + rr*5 + k
            a(f"""
            v_lshlrev_b32 v52, 16, v{x}
            v_and_b32 v53, 0xffff0000, v{x}
            v_mul_f32 v52, v52, v{40+2*k}
            v_mul_f32 v53, v53, v{41+2*k}
            v_cvt_pk_bf16_f32 v54, v52, v53
            v_lshlrev_b32 v52, 16, v54
            v_and_b32 v53, 0xffff0000, v54
            v_add_f32 v{S}, v{S}, v52
            v_add_f32 v{S}, v{S}, v53
            """)
    for m in (1, 2, 4, 8, 16, 32):
        a(f"""
        v_xor_b32 v3, {m}, v1
        v_lshlrev_b32 v3, 2, v3
        ds_bpermute_b32 v62, v3, v60
        ds_bpermute_b32 v63, v3, v61
        s_waitcnt lgkmcnt(0)
        v_add_f32 v60, v60, v62
        v_add_f32 v61, v61, v63
        """)
    a(f"""
    v_cvt_pk_bf16_f32 v62, v60, v61
    v_lshlrev_b32 v60, 16, v62
    v_and_b32 v61, 0xffff0000, v62
    s_mov_b32 s40, 0xbfb8aa3b
    v_mul_f32 v60, s40, v60
    v_mul_f32 v61, s40, v61
    v_exp_f32 v60, v60
    v_exp_f32 v61, v61
    s_nop 0
    v_add_f32 v60, 1.0, v60
    v_add_f32 v61, 1.0, v61
    v_rcp_f32 v60, v60
    v_rcp_f32 v61, v61
    s_nop 0
    v_cvt_pk_bf16_f32 v62, v60, v61
    v_lshlrev_b32 v60, 16, v62
    v_and_b32 v61, 0xffff0000, v62
    s_lshl_b32 s39, s38, 2
    v_mov_b32 v3, s39
    v_cmp_eq_u32 vcc, 0, v1
    s_and_saveexec_b64 s[42:43], vcc
    buffer_store_dwordx2 v[60:61], v3, s[32:35], 0 offen
    s_mov_b64 exec, s[42:43]
    """)
    a.label("k1_misc_done")
    a("s_waitcnt vmcnt(0)")
    a("s_endpgm")
```

```python
from common import *

R_OFF = 0
KH_OFF = 4352
KL_OFF = 12032
KT_OFF = 19712
YP_OFF = 32768
DEBUG = False
DBG_CH = 5

def gen(a):
    a(f"""
    s_load_dwordx2 s[4:5], s[0:1], {KA['u']}
    s_load_dwordx2 s[6:7], s[0:1], {KA['lar']}
    s_load_dwordx2 s[8:9], s[0:1], {KA['aim']}
    s_load_dwordx2 s[10:11], s[0:1], {KA['cre']}
    s_load_dwordx2 s[12:13], s[0:1], {KA['cim']}
    s_load_dwordx2 s[14:15], s[0:1], {KA['ldt']}
    s_load_dwordx2 s[50:51], s[0:1], {KA['dsk']}
    s_load_dwordx2 s[52:53], s[0:1], {KA['ws']}
    v_lshrrev_b32 v7, 6, v0
    v_and_b32 v1, 63, v0
    v_and_b32 v2, 15, v1
    v_lshrrev_b32 v3, 4, v1
    v_lshrrev_b32 v4, 5, v1
    v_and_b32 v5, 31, v1
    v_readfirstlane_b32 s3, v7
    s_waitcnt lgkmcnt(0)
    """)
    srd(a, 16, 4, 0, L*D*2)
    srd(a, 20, 6, 0, D*N*2)
    srd(a, 24, 8, 0, D*N*2)
    srd(a, 28, 10, 0, D*N*2)
    srd(a, 32, 12, 0, D*N*2)
    srd(a, 36, 14, 0, D*2)
    srd(a, 40, 50, 0, D*2)
    srd(a, 44, 52, OFF_AT, SZ_AT)
    a(f"""
    v_mul_u32_u24 v7, 1280, v0
    s_lshl_b32 s54, s2, 1
    """)
    for i in range(8):
        a(f"s_add_u32 s55, s54, {i*256*1280}")
        a(f"buffer_load_ushort v{150+i}, v7, s[16:19], s55 offen")
    a(f"""
    s_lshl_b32 s55, s2, 8
    s_lshl_b32 s56, s3, 6
    s_add_u32 s55, s55, s56
    v_lshlrev_b32 v7, 3, v3
    """)
    for ai, sr in enumerate((20, 24, 28, 32)):
        for s in range(2):
            a(f"buffer_load_dwordx2 v[{16+4*ai+2*s}:{16+4*ai+2*s+1}], v7, s[{sr}:{sr+3}], s55 offen offset:{32*s}")
    a(f"""
    v_mov_b32 v7, s54
    buffer_load_ushort v14, v7, s[36:39], 0 offen
    buffer_load_ushort v15, v7, s[40:43], 0 offen
    v_mov_b32 v92, 0
    v_mov_b32 v93, 0
    v_mov_b32 v94, 0
    v_mov_b32 v95, 0
    v_lshlrev_b32 v7, 4, v0
    ds_write_b128 v7, v[92:95] offset:{KH_OFF}
    ds_write_b128 v7, v[92:95] offset:{KL_OFF}
    v_cmp_gt_u32 vcc, 4, v0
    s_and_saveexec_b64 s[58:59], vcc
    ds_write_b128 v7, v[92:95] offset:{R_OFF+4096}
    s_mov_b64 exec, s[58:59]
    s_mov_b32 s60, 0x3fb8aa3b       ; log2(e)
    s_mov_b32 s61, 0xbfb8aa3b       ; -log2(e)
    s_mov_b32 s62, 0x3e22f983       ; 1/(2pi)
    s_mov_b32 s63, 0x7fff
    s_mov_b32 s64, 384
    s_mov_b32 s65, 256
    s_waitcnt vmcnt(0)
    """)
    a("v_lshlrev_b32 v7, 1, v0")
    a(f"v_sub_u32 v7, {R_OFF + 4094}, v7")
    for i in range(8):
        a(f"v_subrev_u32 v92, {512*i}, v7")
        a(f"ds_write_b16 v92, v{150+i}")
    a("""
    v_lshlrev_b32 v14, 16, v14
    v_mul_f32 v14, s60, v14
    v_exp_f32 v14, v14
    v_lshlrev_b32 v15, 16, v15
    v_cvt_pk_bf16_f32 v14, v14, v14
    v_lshlrev_b32 v14, 16, v14
    """)
    for s in range(2):
        for t in range(4):
            k = 4*s + t
            src = lambda ai: 16 + 4*ai + 2*s + t//2
            ext = (lambda dst, r: f"v_lshlrev_b32 v{dst}, 16, v{r}") if t % 2 == 0 else (lambda dst, r: f"v_and_b32 v{dst}, 0xffff0000, v{r}")
            a(ext(92, src(0)))
            a(f"""
            v_mul_f32 v92, s60, v92
            v_exp_f32 v92, v92
            """)
            a(ext(93, src(1)))
            a(ext(94, src(2)))
            a(ext(95, src(3)))
            a(f"""
            v_cvt_pk_bf16_f32 v92, v92, v92
            v_lshlrev_b32 v92, 16, v92
            v_mul_f32 v92, v92, v14
            v_mul_f32 v{32+k}, s61, v92
            v_mul_f32 v93, v93, v14
            v_mul_f32 v{40+k}, s62, v93
            v_mul_f32 v94, v94, v14
            v_add_f32 v{48+k}, v94, v94
            v_mul_f32 v95, v95, v14
            v_add_f32 v{56+k}, v95, v95
            """)
    for r in range(12):
        a(f"v_mov_b32 v{64+r}, 0")
    for T in range(3):
        if T == 0:
            a("v_lshlrev_b32 v112, 4, v2")
            a("v_mov_b32 v113, v2")
        elif T == 1:
            a("""
            v_lshrrev_b32 v112, 1, v2
            v_lshlrev_b32 v112, 6, v112
            v_and_b32 v113, 1, v2
            v_lshl_add_u32 v112, v113, 1, v112
            v_add_u32 v112, 0x100, v112
            v_subrev_u32 v113, 8, v2
            v_lshlrev_b32 v113, 6, v113
            v_add_u32 v113, 0x200, v113
            v_cmp_gt_u32 vcc, 8, v2
            s_nop 1
            v_cndmask_b32 v112, v113, v112, vcc
            v_lshlrev_b32 v113, 2, v2
            """)
        else:
            a("""
            v_lshlrev_b32 v112, 7, v2
            v_add_u32 v112, 0x400, v112
            v_lshlrev_b32 v113, 3, v2
            """)
        a("v_cvt_f32_u32 v112, v112")
        a("v_cvt_f32_u32 v113, v113")
        for s in range(2):
            for t in range(4):
                k = 4*s + t
                a(f"""
                v_mul_f32 v92, v{32+k}, v112
                v_mul_f32 v93, v{40+k}, v112
                v_mul_f32 v96, v{32+k}, v113
                v_mul_f32 v97, v{40+k}, v113
                v_exp_f32 v92, v92
                v_fract_f32 v93, v93
                v_exp_f32 v96, v96
                v_fract_f32 v97, v97
                v_cos_f32 v94, v93
                v_sin_f32 v95, v93
                v_cos_f32 v98, v97
                v_sin_f32 v99, v97
                s_nop 0
                v_mul_f32 v94, v92, v94
                v_mul_f32 v95, v92, v95
                v_mul_f32 v98, v96, v98
                v_mul_f32 v99, v96, v99
                v_mul_f32 v100, v{48+k}, v94
                v_mul_f32 v101, v{48+k}, v95
                v_fma_f32 v100, -v{56+k}, v95, v100
                v_fma_f32 v101, v{56+k}, v94, v101
                v_sub_f32 v101, 0, v101
                v_cvt_pk_bf16_f32 v{76+t}, v100, v101
                v_cvt_pk_bf16_f32 v{84+t}, v98, v99
                v_lshlrev_b32 v102, 16, v{76+t}
                v_and_b32 v103, 0xffff0000, v{76+t}
                v_lshlrev_b32 v104, 16, v{84+t}
                v_and_b32 v105, 0xffff0000, v{84+t}
                v_sub_f32 v100, v100, v102
                v_sub_f32 v101, v101, v103
                v_sub_f32 v98, v98, v104
                v_sub_f32 v99, v99, v105
                v_cvt_pk_bf16_f32 v{80+t}, v100, v101
                v_cvt_pk_bf16_f32 v{88+t}, v98, v99
                """)
            ac = 64 + 4*T
            a("s_nop 1")
            a(f"v_mfma_f32_16x16x32_bf16 v[{ac}:{ac+3}], v[76:79], v[84:87], v[{ac}:{ac+3}]")
            a(f"v_mfma_f32_16x16x32_bf16 v[{ac}:{ac+3}], v[76:79], v[88:91], v[{ac}:{ac+3}]")
            a(f"v_mfma_f32_16x16x32_bf16 v[{ac}:{ac+3}], v[80:83], v[84:87], v[{ac}:{ac+3}]")
    a(f"""
    v_lshlrev_b32 v92, 6, v3
    v_add_u32 v92, v92, v2
    v_lshlrev_b32 v92, 4, v92
    s_lshl_b32 s55, s3, 2
    v_add_u32 v92, s55, v92
    s_nop 7
    s_nop 3
    """)
    for T in range(3):
        for r in range(4):
            a(f"ds_write_b32 v92, v{64+4*T+r} offset:{KT_OFF + T*4096 + r*256}")
    a("s_waitcnt lgkmcnt(0)")
    a("s_barrier")
    for e in range(8):
        a(f"""
        v_lshlrev_b32 v92, 3, v0
        v_add_u32 v92, {e}, v92
        v_cvt_f32_u32 v93, v92
        v_bfe_u32 v94, v93, 16, 1
        v_add3_u32 v93, v93, v94, s63
        v_lshrrev_b32 v94, 23, v93
        v_bfe_u32 v95, v93, 16, 7
        ; case E>=136
        v_subrev_u32 v96, 136, v94
        v_lshlrev_b32 v96, 7, v96
        v_add3_u32 v96, v96, v95, s64
        ; case E==135
        v_and_b32 v97, 96, v95
        v_and_b32 v98, 1, v95
        v_lshl_add_u32 v97, v98, 4, v97
        v_bfe_u32 v98, v95, 1, 4
        v_add3_u32 v97, v97, v98, s65
        v_cmp_eq_u32 vcc, 135, v94
        s_nop 1
        v_cndmask_b32 v96, v96, v97, vcc
        v_cmp_gt_u32 vcc, 135, v94
        s_nop 1
        v_cndmask_b32 v96, v96, v92, vcc
        v_lshlrev_b32 v96, 4, v96
        ds_read_b128 v[{100+4*e}:{100+4*e+3}], v96 offset:{KT_OFF}
        """)
    a("s_waitcnt lgkmcnt(0)")
    for e in range(8):
        b = 100 + 4*e
        a(f"v_add_f32 v{b}, v{b}, v{b+1}")
        a(f"v_add_f32 v{b+2}, v{b+2}, v{b+3}")
        a(f"v_add_f32 v{b}, v{b}, v{b+2}")
    for e2 in range(4):
        b0 = 100 + 8*e2; b1 = b0 + 4
        a(f"""
        v_cvt_pk_bf16_f32 v{140+e2}, v{b0}, v{b1}
        v_lshlrev_b32 v92, 16, v{140+e2}
        v_and_b32 v93, 0xffff0000, v{140+e2}
        v_sub_f32 v92, v{b0}, v92
        v_sub_f32 v93, v{b1}, v93
        v_cvt_pk_bf16_f32 v{144+e2}, v92, v93
        """)
    a(f"""
    v_lshrrev_b32 v92, 2, v0
    v_mul_u32_u24 v92, 80, v92
    v_and_b32 v93, 3, v0
    v_lshl_add_u32 v92, v93, 4, v92
    ds_write_b128 v92, v[140:143] offset:{KH_OFF + 31*80}
    ds_write_b128 v92, v[144:147] offset:{KL_OFF + 31*80}
    s_waitcnt lgkmcnt(0)
    s_barrier
    """)
    if DEBUG:
        srd(a, 68, 52, 0xE00000, 65536)
        a(f"""
        s_cmp_lg_u32 s2, {DBG_CH}
        s_cbranch_scc1 k1_ssm_nodbg
        v_lshlrev_b32 v92, 4, v0
        """)
        for i in range(8):
            a(f"ds_read_b128 v[100:103], v92 offset:{i*4096}")
            a(f"v_add_u32 v93, {i*4096}, v92")
            a("s_waitcnt lgkmcnt(0)")
            a(f"buffer_store_dwordx4 v[100:103], v93, s[68:71], 0 offen")
            a("s_waitcnt vmcnt(0)")
        a.label("k1_ssm_nodbg")
    ACC = 16
    for r in range(32):
        a(f"v_mov_b32 v{ACC+r}, 0")
    a(f"""
    v_lshlrev_b32 v6, 1, v5
    v_sub_u32 v6, {R_OFF + 4094}, v6
    v_lshl_add_u32 v6, v4, 4, v6
    s_lshl_b32 s55, s3, 6
    v_subrev_u32 v6, s55, v6
    v_mul_u32_u24 v7, 80, v5
    v_lshl_add_u32 v7, v4, 4, v7
    v_add_u32 v7, {31*80}, v7
    s_mul_i32 s55, s3, 80
    v_subrev_u32 v7, s55, v7
    """)
    ST = 48
    def afr(st, ks): return ST + 40*st + 4*ks
    def bfr(st, c, part, ks): return ST + 40*st + 8 + 16*c + 8*part + 4*ks
    def reads(dd):
        st = dd % 2
        a(f"v_subrev_u32 v8, {256*dd}, v6")
        a(f"v_subrev_u32 v9, {320*dd}, v7")
        for ks in range(2):
            a(f"ds_read_b128 v[{afr(st,ks)}:{afr(st,ks)+3}], v8 offset:{32*ks}")
        for c in ([0, 1] if dd < 8 else [1]):
            for part in range(2):
                for ks in range(2):
                    off = (KH_OFF if part == 0 else KL_OFF) + 2560*c + 32*ks
                    a(f"ds_read_b128 v[{bfr(st,c,part,ks)}:{bfr(st,c,part,ks)+3}], v9 offset:{off}")
    reads(0)
    for dd in range(16):
        st = dd % 2
        if dd < 15:
            reads(dd + 1)
            a(f"s_waitcnt lgkmcnt({10 if dd + 1 < 8 else 6})")
        else:
            a("s_waitcnt lgkmcnt(0)")
        for c in ([0, 1] if dd < 8 else [1]):
            for part in range(2):
                for ks in range(2):
                    ac = ACC + 16*c
                    a(f"v_mfma_f32_32x32x16_bf16 v[{ac}:{ac+15}], v[{afr(st,ks)}:{afr(st,ks)+3}], v[{bfr(st,c,part,ks)}:{bfr(st,c,part,ks)+3}], v[{ac}:{ac+15}]")
    a(f"""
    v_lshlrev_b32 v8, 4, v1
    s_lshl_b32 s55, s3, 13
    v_add_u32 v8, s55, v8
    s_nop 7
    s_nop 7
    """)
    for c in range(2):
        for k4 in range(4):
            r0 = ACC + 16*c + 4*k4
            a(f"ds_write_b128 v8, v[{r0}:{r0+3}] offset:{YP_OFF + (c*4 + k4)*1024}")
    a(f"""
    s_waitcnt lgkmcnt(0)
    s_barrier
    s_lshr_b32 s55, s3, 1           ; c
    s_and_b32 s56, s3, 1
    s_lshl_b32 s56, s56, 1          ; k4 base
    s_lshl_b32 s57, s55, 2
    s_add_u32 s57, s57, s56         ; c*4 + k4base
    s_lshl_b32 s57, s57, 10
    v_lshlrev_b32 v8, 4, v1
    v_add_u32 v8, s57, v8
    ; l = 32*(32c + jj) + 8*k4 + 4h
    s_lshl_b32 s57, s55, 10
    s_lshl_b32 s58, s56, 3
    s_add_u32 s57, s57, s58
    v_lshlrev_b32 v9, 5, v5
    v_lshl_add_u32 v9, v4, 2, v9
    v_add_u32 v9, s57, v9
    v_lshlrev_b32 v10, 1, v9
    v_sub_u32 v10, {R_OFF + 4088}, v10
    v_subrev_u32 v11, 16, v10
    ds_read_b64 v[60:61], v10
    ds_read_b64 v[62:63], v11
    s_lshl_b32 s57, s2, 12
    v_lshlrev_b32 v12, 1, v9
    v_add_u32 v12, s57, v12
    """)
    for kk in range(2):
        P = 64
        for ww in range(4):
            a(f"ds_read_b128 v[{P+4*ww}:{P+4*ww+3}], v8 offset:{YP_OFF + ww*8192 + kk*1024}")
        a("s_waitcnt lgkmcnt(0)")
        for r in range(4):
            a(f"v_add_f32 v{P+r}, v{P+r}, v{P+4+r}")
            a(f"v_add_f32 v{P+8+r}, v{P+8+r}, v{P+12+r}")
        for r in range(4):
            a(f"v_add_f32 v{P+r}, v{P+r}, v{P+8+r}")
        ur = 60 + 2*kk
        a(f"""
        v_cvt_pk_bf16_f32 v80, v{P}, v{P+1}
        v_cvt_pk_bf16_f32 v81, v{P+2}, v{P+3}
        v_lshlrev_b32 v{P}, 16, v80
        v_and_b32 v{P+1}, 0xffff0000, v80
        v_lshlrev_b32 v{P+2}, 16, v81
        v_and_b32 v{P+3}, 0xffff0000, v81
        v_and_b32 v82, 0xffff0000, v{ur+1}
        v_lshlrev_b32 v83, 16, v{ur+1}
        v_and_b32 v84, 0xffff0000, v{ur}
        v_lshlrev_b32 v85, 16, v{ur}
        v_mul_f32 v82, v82, v15
        v_mul_f32 v83, v83, v15
        v_mul_f32 v84, v84, v15
        v_mul_f32 v85, v85, v15
        v_cvt_pk_bf16_f32 v80, v82, v83
        v_cvt_pk_bf16_f32 v81, v84, v85
        v_lshlrev_b32 v82, 16, v80
        v_and_b32 v83, 0xffff0000, v80
        v_lshlrev_b32 v84, 16, v81
        v_and_b32 v85, 0xffff0000, v81
        v_add_f32 v82, v82, v{P}
        v_add_f32 v83, v83, v{P+1}
        v_add_f32 v84, v84, v{P+2}
        v_add_f32 v85, v85, v{P+3}
        v_cvt_pk_bf16_f32 v80, v82, v83
        v_cvt_pk_bf16_f32 v81, v84, v85
        buffer_store_dwordx2 v[80:81], v12, s[44:47], 0 offen offset:{16*kk}
        """)
    a("s_waitcnt vmcnt(0)")
    a("s_endpgm")
```

```python
from common import *

def gen_k2(a):
    ACC = 16
    ST = 96
    def accr(t): return ACC + 4*t
    def fa(stage, dt): return ST + 36*stage + 4*dt
    def fb(stage, lt): return ST + 36*stage + 20 + 4*lt
    a.label("k2_kernel")
    a("""
    s_cmp_ge_u32 s2, 256
    s_cbranch_scc1 k2_end
    s_load_dwordx2 s[4:5], s[0:1], 104
    s_load_dwordx2 s[6:7], s[0:1], 88
    v_lshrrev_b32 v5, 6, v0
    v_and_b32 v1, 63, v0
    v_and_b32 v2, 15, v1
    v_lshrrev_b32 v3, 4, v1
    v_readfirstlane_b32 s8, v5
    s_lshr_b32 s9, s2, 3
    s_and_b32 s10, s2, 7
    v_mul_u32_u24 v4, 0xd80, v2
    v_lshlrev_b32 v5, 4, v3
    v_add_u32 v4, v4, v5
    s_mul_i32 s45, s8, 14
    s_cmp_eq_u32 s8, 3
    s_cselect_b32 s46, 1, 0
    s_sub_u32 s45, s45, s46
    s_lshl_b32 s45, s45, 6
    s_mul_i32 s47, s10, 276480
    s_add_u32 s47, s47, s45
    s_mul_i32 s48, s9, 221184
    s_add_u32 s48, s48, s45
    """)
    for t in range(5):
        a(f"s_add_u32 s{36+t}, s47, {t*55296}")
    for t in range(4):
        a(f"s_add_u32 s{41+t}, s48, {t*55296}")
    a("s_waitcnt lgkmcnt(0)")
    srd(a, 16, 4, OFF_H, SZ_H)
    srd(a, 20, 4, OFF_W2T, SZ_W2T)
    srd(a, 24, 4, OFF_AT, SZ_AT)
    srd(a, 28, 4, OFF_G, SZ_G)
    srd(a, 32, 6, 0, L*D*2)
    for r in range(80):
        a(f"v_mov_b32 v{ACC+r}, 0")
    def loads(step):
        st = step % 3
        for dt in range(5):
            a(f"buffer_load_dwordx4 v[{fa(st,dt)}:{fa(st,dt)+3}], v4, s[20:23], s{36+dt} offen offset:{step*64}")
        for lt in range(4):
            a(f"buffer_load_dwordx4 v[{fb(st,lt)}:{fb(st,lt)+3}], v4, s[16:19], s{41+lt} offen offset:{step*64}")
    loads(0); loads(1)
    NS = 14
    for s in range(NS):
        if s + 2 < NS:
            loads(s + 2)
            a("s_waitcnt vmcnt(18)")
        elif s + 1 < NS:
            a("s_waitcnt vmcnt(9)")
        else:
            a("s_waitcnt vmcnt(0)")
            a("s_cmp_ge_u32 s8, 2")
            a("s_cbranch_scc1 k2_skip13")
        st = s % 3
        for dt in range(5):
            for lt in range(4):
                t = dt*4 + lt
                a(f"v_mfma_f32_16x16x32_bf16 v[{accr(t)}:{accr(t)+3}], v[{fa(st,dt)}:{fa(st,dt)+3}], v[{fb(st,lt)}:{fb(st,lt)+3}], v[{accr(t)}:{accr(t)+3}]")
    a.label("k2_skip13")
    a("""
    s_lshl_b32 s49, s9, 6
    s_lshl_b32 s50, s8, 4
    s_add_u32 s49, s49, s50
    v_add_u32 v6, s49, v2
    v_lshlrev_b32 v7, 2, v6
    buffer_load_dword v10, v7, s[28:31], 0 offen
    s_mul_i32 s50, s10, 80
    v_lshlrev_b32 v8, 2, v3
    v_add_u32 v8, s50, v8
    v_lshlrev_b32 v8, 11, v8
    v_add_u32 v8, v8, v6
    v_lshlrev_b32 v8, 1, v8
    """)
    AR = 96
    for dt in range(5):
        for r in range(4):
            a(f"s_mov_b32 s{52 + (dt*4+r)%4}, {(16*dt + r)*4096}")
            a(f"buffer_load_ushort v{AR+dt*4+r}, v8, s[24:27], s{52 + (dt*4+r)%4} offen")
    a("""
    s_nop 7
    s_nop 1
    v_lshlrev_b32 v11, 4, v1
    s_lshl_b32 s50, s8, 10
    v_add_u32 v12, s50, v11
    v_add_u32 v13, 40960, v12
    """)
    for t in range(20):
        base, off = (12, t*4096) if t < 10 else (13, (t-10)*4096)
        a(f"ds_write_b128 v{base}, v[{accr(t)}:{accr(t)+3}] offset:{off}")
    a("""
    s_waitcnt lgkmcnt(0)
    s_barrier
    s_lshl_b32 s50, s8, 12
    v_add_u32 v12, s50, v11
    """)
    a("""
    v_mul_u32_u24 v14, 640, v6
    s_mul_i32 s50, s10, 80
    v_lshlrev_b32 v15, 2, v3
    v_add3_u32 v14, v14, v15, s50
    v_lshlrev_b32 v14, 1, v14
    s_waitcnt vmcnt(0)
    v_sub_f32 v15, 1.0, v10
    v_cvt_pk_bf16_f32 v15, v15, v15
    v_lshlrev_b32 v15, 16, v15
    """)
    P = 120
    for dt in range(5):
        for ww in range(4):
            a(f"ds_read_b128 v[{P+4*ww}:{P+4*ww+3}], v12 offset:{ww*1024}")
        if dt < 4:
            a("v_add_u32 v12, 16384, v12")
        a("s_waitcnt lgkmcnt(0)")
        for r in range(4):
            a(f"v_add_f32 v{P+r}, v{P+r}, v{P+4+r}")
            a(f"v_add_f32 v{P+8+r}, v{P+8+r}, v{P+12+r}")
        for r in range(4):
            a(f"v_add_f32 v{P+r}, v{P+r}, v{P+8+r}")
        T = 136
        a(f"v_cvt_pk_bf16_f32 v{T}, v{P}, v{P+1}")
        a(f"v_cvt_pk_bf16_f32 v{T+1}, v{P+2}, v{P+3}")
        a(f"v_lshlrev_b32 v{P}, 16, v{T}")
        a(f"v_and_b32 v{P+1}, 0xffff0000, v{T}")
        a(f"v_lshlrev_b32 v{P+2}, 16, v{T+1}")
        a(f"v_and_b32 v{P+3}, 0xffff0000, v{T+1}")
        for r in range(4):
            a(f"v_mul_f32 v{P+r}, v15, v{P+r}")
        for r in range(4):
            a(f"v_lshlrev_b32 v{P+4+r}, 16, v{AR+dt*4+r}")
            a(f"v_mul_f32 v{P+4+r}, v10, v{P+4+r}")
        for k in range(2):
            for base in (P, P+4):
                a(f"v_cvt_pk_bf16_f32 v{T}, v{base+2*k}, v{base+2*k+1}")
                a(f"v_lshlrev_b32 v{base+2*k}, 16, v{T}")
                a(f"v_and_b32 v{base+2*k+1}, 0xffff0000, v{T}")
        for r in range(4):
            a(f"v_add_f32 v{P+r}, v{P+r}, v{P+4+r}")
        a(f"v_cvt_pk_bf16_f32 v{T}, v{P}, v{P+1}")
        a(f"v_cvt_pk_bf16_f32 v{T+1}, v{P+2}, v{P+3}")
        a(f"buffer_store_dwordx2 v[{T}:{T+1}], v14, s[32:35], 0 offen offset:{dt*32}")
    a("s_waitcnt vmcnt(0)")
    a.label("k2_end")
    a("s_endpgm")
```

```python
import sys
sys.path.insert(0, 'gen')
from common import *
import importlib
import k2
importlib.reload(k2)

NAME = "gated_mix__ssm_conv_s4d__dense_activation_silu__prompt"

def build(include_k1=True):
    hdr = open(f"cdna_kernels/{NAME}.s.ref").read().split("; Override launch")[0]
    a = Asm()
    out = hdr
    launches = []
    if include_k1:
        import k1
        importlib.reload(k1)
        launches.append(f"; @launch kernel=k1_kernel grid=({k1.K1_GRID},1,1) block=(256,1,1) lds={k1.K1_LDS}")
    launches.append("; @launch kernel=k2_kernel grid=(256,1,1) block=(256,1,1) lds=81920")
    out += "\n".join(launches) + "\n"
    out += '.amdgcn_target "amdgcn-amd-amdhsa--gfx950"\n.text\n'
    descs = ""
    if include_k1:
        out += ".globl k1_kernel\n.p2align 8\n.type k1_kernel,@function\n"
        a1 = Asm(); k1.gen_k1(a1); out += a1.text()
        descs += kdesc("k1_kernel", k1.K1_VGPR, 100)
    out += ".globl k2_kernel\n.p2align 8\n.type k2_kernel,@function\n"
    a2 = Asm(); k2.gen_k2(a2); out += a2.text()
    descs += kdesc("k2_kernel", 208, 100)
    out += '.section .rodata,"a"\n.p2align 6\n' + descs
    return out

if __name__ == "__main__":
    inc = "--nok1" not in sys.argv
    s = build(inc)
    open(f"cdna_kernels/{NAME}.s", "w").write(s)
    print("written", len(s))
```

```python
from common import *
import k1_gemm1, k1_misc, k1_ssm

N_SSM = 640
N_G1 = 288
N_MISC = 270
K1_GRID = N_SSM + N_G1 + N_MISC
K1_LDS = 37120
K1_VGPR = 128
import os
ROLES = os.environ.get('K1_ROLES', 'sgm')

def gen_k1(a):
    a.label("k1_kernel")
    a(f"""
    s_cmp_ge_u32 s2, {K1_GRID}
    s_cbranch_scc1 k1_end
    s_cmp_lt_u32 s2, {N_SSM}
    s_cbranch_scc1 k1_ssm
    s_cmp_lt_u32 s2, {N_SSM + N_G1}
    s_cbranch_scc1 k1_gemm1
    s_branch k1_misc
    """)
    a.label("k1_gemm1")
    if 'g' not in ROLES: a("s_endpgm")
    k1_gemm1.gen(a, N_SSM)
    a.label("k1_misc")
    if 'm' not in ROLES: a("s_endpgm")
    k1_misc.gen(a, N_SSM + N_G1)
    a.label("k1_ssm")
    if 's' not in ROLES: a("s_endpgm")
    k1_ssm.gen(a)
    a.label("k1_end")
    a("s_endpgm")
```

```python
from common import *

R_OFF = 0
KH_OFF = 4352
KL_OFF = 12032
KT_OFF = 19712
YP_OFF = 32768
DEBUG = False
DBG_CH = 5

STAMP = False
def gen(a):
    def stamp(k):
        if STAMP:
            a(f's_memtime s[{70+2*k}:{71+2*k}]')
            a('s_waitcnt lgkmcnt(0)')
    stamp(0)
    a(f"""
    s_load_dwordx2 s[4:5], s[0:1], {KA['u']}
    s_load_dwordx2 s[6:7], s[0:1], {KA['lar']}
    s_load_dwordx2 s[8:9], s[0:1], {KA['aim']}
    s_load_dwordx2 s[10:11], s[0:1], {KA['cre']}
    s_load_dwordx2 s[12:13], s[0:1], {KA['cim']}
    s_load_dwordx2 s[14:15], s[0:1], {KA['ldt']}
    s_load_dwordx2 s[50:51], s[0:1], {KA['dsk']}
    s_load_dwordx2 s[52:53], s[0:1], {KA['ws']}
    v_lshrrev_b32 v7, 6, v0
    v_and_b32 v1, 63, v0
    v_and_b32 v2, 15, v1
    v_lshrrev_b32 v3, 4, v1
    v_lshrrev_b32 v4, 5, v1
    v_and_b32 v5, 31, v1
    v_readfirstlane_b32 s3, v7
    s_waitcnt lgkmcnt(0)
    """)
    srd(a, 16, 4, 0, L*D*2)
    srd(a, 20, 6, 0, D*N*2)
    srd(a, 24, 8, 0, D*N*2)
    srd(a, 28, 10, 0, D*N*2)
    srd(a, 32, 12, 0, D*N*2)
    srd(a, 36, 14, 0, D*2)
    srd(a, 40, 50, 0, D*2)
    srd(a, 44, 52, OFF_AT, SZ_AT)
    a(f"""
    v_mul_u32_u24 v7, 1280, v0
    s_lshl_b32 s54, s2, 1
    """)
    for i in range(8):
        a(f"s_add_u32 s55, s54, {i*256*1280}")
        a(f"buffer_load_ushort v{150+i}, v7, s[16:19], s55 offen")
    a(f"""
    s_lshl_b32 s55, s2, 8
    s_lshl_b32 s56, s3, 6
    s_add_u32 s55, s55, s56
    v_lshlrev_b32 v7, 3, v3
    """)
    for ai, sr in enumerate((20, 24, 28, 32)):
        for s in range(2):
            a(f"buffer_load_dwordx2 v[{16+4*ai+2*s}:{16+4*ai+2*s+1}], v7, s[{sr}:{sr+3}], s55 offen offset:{32*s}")
    a(f"""
    v_mov_b32 v7, s54
    buffer_load_ushort v14, v7, s[36:39], 0 offen
    buffer_load_ushort v15, v7, s[40:43], 0 offen
    v_mov_b32 v92, 0
    v_mov_b32 v93, 0
    v_mov_b32 v94, 0
    v_mov_b32 v95, 0
    v_lshlrev_b32 v7, 4, v0
    ds_write_b128 v7, v[92:95] offset:{KH_OFF}
    ds_write_b128 v7, v[92:95] offset:{KL_OFF}
    v_cmp_gt_u32 vcc, 4, v0
    s_and_saveexec_b64 s[58:59], vcc
    ds_write_b128 v7, v[92:95] offset:{R_OFF+4096}
    s_mov_b64 exec, s[58:59]
    s_mov_b32 s60, 0x3fb8aa3b       ; log2(e)
    s_mov_b32 s61, 0xbfb8aa3b       ; -log2(e)
    s_mov_b32 s62, 0x3e22f983       ; 1/(2pi)
    s_mov_b32 s63, 0x7fff
    s_mov_b32 s64, 384
    s_mov_b32 s65, 256
    s_waitcnt vmcnt(0)
    """)
    stamp(1)
    a("v_lshlrev_b32 v7, 1, v0")
    a(f"v_sub_u32 v7, {R_OFF + 4094}, v7")
    for i in range(8):
        a(f"v_subrev_u32 v92, {512*i}, v7")
        a(f"ds_write_b16 v92, v{150+i}")
    a("""
    v_lshlrev_b32 v14, 16, v14
    v_mul_f32 v14, s60, v14
    v_exp_f32 v14, v14
    v_lshlrev_b32 v15, 16, v15
    v_cvt_pk_bf16_f32 v14, v14, v14
    v_lshlrev_b32 v14, 16, v14
    """)
    for s in range(2):
        for t in range(4):
            k = 4*s + t
            src = lambda ai: 16 + 4*ai + 2*s + t//2
            ext = (lambda dst, r: f"v_lshlrev_b32 v{dst}, 16, v{r}") if t % 2 == 0 else (lambda dst, r: f"v_and_b32 v{dst}, 0xffff0000, v{r}")
            a(ext(92, src(0)))
            a(f"""
            v_mul_f32 v92, s60, v92
            v_exp_f32 v92, v92
            """)
            a(ext(93, src(1)))
            a(ext(94, src(2)))
            a(ext(95, src(3)))
            a(f"""
            v_cvt_pk_bf16_f32 v92, v92, v92
            v_lshlrev_b32 v92, 16, v92
            v_mul_f32 v92, v92, v14
            v_mul_f32 v{32+k}, s61, v92
            v_mul_f32 v93, v93, v14
            v_mul_f32 v{40+k}, s62, v93
            v_mul_f32 v94, v94, v14
            v_add_f32 v{48+k}, v94, v94
            v_mul_f32 v95, v95, v14
            v_add_f32 v{56+k}, v95, v95
            """)
    for r in range(12):
        a(f"v_mov_b32 v{64+r}, 0")
    for T in range(3):
        if T == 0:
            a("v_lshlrev_b32 v112, 4, v2")
            a("v_mov_b32 v113, v2")
        elif T == 1:
            a("""
            v_lshrrev_b32 v112, 1, v2
            v_lshlrev_b32 v112, 6, v112
            v_and_b32 v113, 1, v2
            v_lshl_add_u32 v112, v113, 1, v112
            v_add_u32 v112, 0x100, v112
            v_subrev_u32 v113, 8, v2
            v_lshlrev_b32 v113, 6, v113
            v_add_u32 v113, 0x200, v113
            v_cmp_gt_u32 vcc, 8, v2
            s_nop 1
            v_cndmask_b32 v112, v113, v112, vcc
            v_lshlrev_b32 v113, 2, v2
            """)
        else:
            a("""
            v_lshlrev_b32 v112, 7, v2
            v_add_u32 v112, 0x400, v112
            v_lshlrev_b32 v113, 3, v2
            """)
        a("v_cvt_f32_u32 v112, v112")
        a("v_cvt_f32_u32 v113, v113")
        for s in range(2):
            for t in range(4):
                k = 4*s + t
                a(f"""
                v_mul_f32 v92, v{32+k}, v112
                v_mul_f32 v93, v{40+k}, v112
                v_mul_f32 v96, v{32+k}, v113
                v_mul_f32 v97, v{40+k}, v113
                v_exp_f32 v92, v92
                v_fract_f32 v93, v93
                v_exp_f32 v96, v96
                v_fract_f32 v97, v97
                v_cos_f32 v94, v93
                v_sin_f32 v95, v93
                v_cos_f32 v98, v97
                v_sin_f32 v99, v97
                s_nop 0
                v_mul_f32 v94, v92, v94
                v_mul_f32 v95, v92, v95
                v_mul_f32 v98, v96, v98
                v_mul_f32 v99, v96, v99
                v_mul_f32 v100, v{48+k}, v94
                v_mul_f32 v101, v{48+k}, v95
                v_fma_f32 v100, -v{56+k}, v95, v100
                v_fma_f32 v101, v{56+k}, v94, v101
                v_sub_f32 v101, 0, v101
                v_cvt_pk_bf16_f32 v{76+t}, v100, v101
                v_cvt_pk_bf16_f32 v{84+t}, v98, v99
                v_lshlrev_b32 v102, 16, v{76+t}
                v_and_b32 v103, 0xffff0000, v{76+t}
                v_lshlrev_b32 v104, 16, v{84+t}
                v_and_b32 v105, 0xffff0000, v{84+t}
                v_sub_f32 v100, v100, v102
                v_sub_f32 v101, v101, v103
                v_sub_f32 v98, v98, v104
                v_sub_f32 v99, v99, v105
                v_cvt_pk_bf16_f32 v{80+t}, v100, v101
                v_cvt_pk_bf16_f32 v{88+t}, v98, v99
                """)
            ac = 64 + 4*T
            a("s_nop 1")
            a(f"v_mfma_f32_16x16x32_bf16 v[{ac}:{ac+3}], v[76:79], v[84:87], v[{ac}:{ac+3}]")
            a(f"v_mfma_f32_16x16x32_bf16 v[{ac}:{ac+3}], v[76:79], v[88:91], v[{ac}:{ac+3}]")
            a(f"v_mfma_f32_16x16x32_bf16 v[{ac}:{ac+3}], v[80:83], v[84:87], v[{ac}:{ac+3}]")
    stamp(2)
    a(f"""
    v_lshlrev_b32 v92, 6, v3
    v_add_u32 v92, v92, v2
    v_lshlrev_b32 v92, 4, v92
    s_lshl_b32 s55, s3, 2
    v_add_u32 v92, s55, v92
    s_nop 7
    s_nop 3
    """)
    for T in range(3):
        for r in range(4):
            a(f"ds_write_b32 v92, v{64+4*T+r} offset:{KT_OFF + T*4096 + r*256}")
    a("s_waitcnt lgkmcnt(0)")
    a("s_barrier")
    stamp(3)
    for e in range(8):
        a(f"""
        v_lshlrev_b32 v92, 3, v0
        v_add_u32 v92, {e}, v92
        v_cvt_f32_u32 v93, v92
        v_bfe_u32 v94, v93, 16, 1
        v_add3_u32 v93, v93, v94, s63
        v_lshrrev_b32 v94, 23, v93
        v_bfe_u32 v95, v93, 16, 7
        ; case E>=136
        v_subrev_u32 v96, 136, v94
        v_lshlrev_b32 v96, 7, v96
        v_add3_u32 v96, v96, v95, s64
        ; case E==135
        v_and_b32 v97, 96, v95
        v_and_b32 v98, 1, v95
        v_lshl_add_u32 v97, v98, 4, v97
        v_bfe_u32 v98, v95, 1, 4
        v_add3_u32 v97, v97, v98, s65
        v_cmp_eq_u32 vcc, 135, v94
        s_nop 1
        v_cndmask_b32 v96, v96, v97, vcc
        v_cmp_gt_u32 vcc, 135, v94
        s_nop 1
        v_cndmask_b32 v96, v96, v92, vcc
        v_lshlrev_b32 v96, 4, v96
        ds_read_b128 v[{100+4*e}:{100+4*e+3}], v96 offset:{KT_OFF}
        """)
    a("s_waitcnt lgkmcnt(0)")
    for e in range(8):
        b = 100 + 4*e
        a(f"v_add_f32 v{b}, v{b}, v{b+1}")
        a(f"v_add_f32 v{b+2}, v{b+2}, v{b+3}")
        a(f"v_add_f32 v{b}, v{b}, v{b+2}")
    for e2 in range(4):
        b0 = 100 + 8*e2; b1 = b0 + 4
        a(f"""
        v_cvt_pk_bf16_f32 v{140+e2}, v{b0}, v{b1}
        v_lshlrev_b32 v92, 16, v{140+e2}
        v_and_b32 v93, 0xffff0000, v{140+e2}
        v_sub_f32 v92, v{b0}, v92
        v_sub_f32 v93, v{b1}, v93
        v_cvt_pk_bf16_f32 v{144+e2}, v92, v93
        """)
    a(f"""
    v_lshrrev_b32 v92, 2, v0
    v_mul_u32_u24 v92, 80, v92
    v_and_b32 v93, 3, v0
    v_lshl_add_u32 v92, v93, 4, v92
    ds_write_b128 v92, v[140:143] offset:{KH_OFF + 31*80}
    ds_write_b128 v92, v[144:147] offset:{KL_OFF + 31*80}
    s_waitcnt lgkmcnt(0)
    s_barrier
    """)
    if DEBUG:
        srd(a, 68, 52, 0xE00000, 65536)
        a(f"""
        s_cmp_lg_u32 s2, {DBG_CH}
        s_cbranch_scc1 k1_ssm_nodbg
        v_lshlrev_b32 v92, 4, v0
        """)
        for i in range(8):
            a(f"ds_read_b128 v[100:103], v92 offset:{i*4096}")
            a(f"v_add_u32 v93, {i*4096}, v92")
            a("s_waitcnt lgkmcnt(0)")
            a(f"buffer_store_dwordx4 v[100:103], v93, s[68:71], 0 offen")
            a("s_waitcnt vmcnt(0)")
        a.label("k1_ssm_nodbg")
    stamp(4)
    ACC = 16
    for r in range(32):
        a(f"v_mov_b32 v{ACC+r}, 0")
    a(f"""
    v_lshlrev_b32 v6, 1, v5
    v_sub_u32 v6, {R_OFF + 4094}, v6
    v_lshl_add_u32 v6, v4, 4, v6
    s_lshl_b32 s55, s3, 6
    v_subrev_u32 v6, s55, v6
    v_mul_u32_u24 v7, 80, v5
    v_lshl_add_u32 v7, v4, 4, v7
    v_add_u32 v7, {31*80}, v7
    s_mul_i32 s55, s3, 80
    v_subrev_u32 v7, s55, v7
    """)
    ST = 48
    def afr(st, ks): return ST + 40*st + 4*ks
    def bfr(st, c, part, ks): return ST + 40*st + 8 + 16*c + 8*part + 4*ks
    def reads(dd):
        st = dd % 2
        a(f"v_subrev_u32 v8, {256*dd}, v6")
        a(f"v_subrev_u32 v9, {320*dd}, v7")
        for ks in range(2):
            a(f"ds_read_b128 v[{afr(st,ks)}:{afr(st,ks)+3}], v8 offset:{32*ks}")
        for c in ([0, 1] if dd < 8 else [1]):
            for part in range(2):
                for ks in range(2):
                    off = (KH_OFF if part == 0 else KL_OFF) + 2560*c + 32*ks
                    a(f"ds_read_b128 v[{bfr(st,c,part,ks)}:{bfr(st,c,part,ks)+3}], v9 offset:{off}")
    reads(0)
    for dd in range(16):
        st = dd % 2
        if dd < 15:
            reads(dd + 1)
            a(f"s_waitcnt lgkmcnt({10 if dd + 1 < 8 else 6})")
        else:
            a("s_waitcnt lgkmcnt(0)")
        for c in ([0, 1] if dd < 8 else [1]):
            for part in range(2):
                for ks in range(2):
                    ac = ACC + 16*c
                    a(f"v_mfma_f32_32x32x16_bf16 v[{ac}:{ac+15}], v[{afr(st,ks)}:{afr(st,ks)+3}], v[{bfr(st,c,part,ks)}:{bfr(st,c,part,ks)+3}], v[{ac}:{ac+15}]")
    stamp(5)
    a(f"""
    v_lshlrev_b32 v8, 4, v1
    s_lshl_b32 s55, s3, 13
    v_add_u32 v8, s55, v8
    s_nop 7
    s_nop 7
    """)
    for c in range(2):
        for k4 in range(4):
            r0 = ACC + 16*c + 4*k4
            a(f"ds_write_b128 v8, v[{r0}:{r0+3}] offset:{YP_OFF + (c*4 + k4)*1024}")
    a(f"""
    s_waitcnt lgkmcnt(0)
    s_barrier
    s_lshr_b32 s55, s3, 1           ; c
    s_and_b32 s56, s3, 1
    s_lshl_b32 s56, s56, 1          ; k4 base
    s_lshl_b32 s57, s55, 2
    s_add_u32 s57, s57, s56         ; c*4 + k4base
    s_lshl_b32 s57, s57, 10
    v_lshlrev_b32 v8, 4, v1
    v_add_u32 v8, s57, v8
    ; l = 32*(32c + jj) + 8*k4 + 4h
    s_lshl_b32 s57, s55, 10
    s_lshl_b32 s58, s56, 3
    s_add_u32 s57, s57, s58
    v_lshlrev_b32 v9, 5, v5
    v_lshl_add_u32 v9, v4, 2, v9
    v_add_u32 v9, s57, v9
    v_lshlrev_b32 v10, 1, v9
    v_sub_u32 v10, {R_OFF + 4088}, v10
    v_subrev_u32 v11, 16, v10
    ds_read_b64 v[60:61], v10
    ds_read_b64 v[62:63], v11
    s_lshl_b32 s57, s2, 12
    v_lshlrev_b32 v12, 1, v9
    v_add_u32 v12, s57, v12
    """)
    for kk in range(2):
        P = 64
        for ww in range(4):
            a(f"ds_read_b128 v[{P+4*ww}:{P+4*ww+3}], v8 offset:{YP_OFF + ww*8192 + kk*1024}")
        a("s_waitcnt lgkmcnt(0)")
        for r in range(4):
            a(f"v_add_f32 v{P+r}, v{P+r}, v{P+4+r}")
            a(f"v_add_f32 v{P+8+r}, v{P+8+r}, v{P+12+r}")
        for r in range(4):
            a(f"v_add_f32 v{P+r}, v{P+r}, v{P+8+r}")
        ur = 60 + 2*kk
        a(f"""
        v_cvt_pk_bf16_f32 v80, v{P}, v{P+1}
        v_cvt_pk_bf16_f32 v81, v{P+2}, v{P+3}
        v_lshlrev_b32 v{P}, 16, v80
        v_and_b32 v{P+1}, 0xffff0000, v80
        v_lshlrev_b32 v{P+2}, 16, v81
        v_and_b32 v{P+3}, 0xffff0000, v81
        v_and_b32 v82, 0xffff0000, v{ur+1}
        v_lshlrev_b32 v83, 16, v{ur+1}
        v_and_b32 v84, 0xffff0000, v{ur}
        v_lshlrev_b32 v85, 16, v{ur}
        v_mul_f32 v82, v82, v15
        v_mul_f32 v83, v83, v15
        v_mul_f32 v84, v84, v15
        v_mul_f32 v85, v85, v15
        v_cvt_pk_bf16_f32 v80, v82, v83
        v_cvt_pk_bf16_f32 v81, v84, v85
        v_lshlrev_b32 v82, 16, v80
        v_and_b32 v83, 0xffff0000, v80
        v_lshlrev_b32 v84, 16, v81
        v_and_b32 v85, 0xffff0000, v81
        v_add_f32 v82, v82, v{P}
        v_add_f32 v83, v83, v{P+1}
        v_add_f32 v84, v84, v{P+2}
        v_add_f32 v85, v85, v{P+3}
        v_cvt_pk_bf16_f32 v80, v82, v83
        v_cvt_pk_bf16_f32 v81, v84, v85
        buffer_store_dwordx2 v[80:81], v12, s[44:47], 0 offen offset:{16*kk}
        """)
    a("s_waitcnt vmcnt(0)")
    if STAMP:
        stamp(6)
        srd(a, 88, 52, 0xE00000, 1 << 20)
        a("""
        v_cmp_eq_u32 vcc, 0, v1
        s_and_saveexec_b64 s[58:59], vcc
        s_lshl_b32 s55, s2, 2
        s_add_u32 s55, s55, s3
        s_lshl_b32 s55, s55, 6
        v_mov_b32 v92, s55
        """)
        for k in range(7):
            a(f"v_mov_b32 v94, s{70+2*k}")
            a(f"v_mov_b32 v95, s{71+2*k}")
            a(f"buffer_store_dwordx2 v[94:95], v92, s[88:91], 0 offen offset:{8*k}")
        a("s_waitcnt vmcnt(0)")
    a("s_endpgm")
```

```python
from common import *

K2_LDS = 81920
K2_VGPR = 248

import os
STAMP2 = os.environ.get('K2_STAMP') == '1'
def gen_k2(a):
    def stamp(k):
        if STAMP2:
            a(f's_memtime s[{70+2*k}:{71+2*k}]')
            a('s_waitcnt lgkmcnt(0)')
    RS = 144
    BUF = 144 * RS
    ACC = 16
    FR = 56
    PF = 112
    DEP = 6
    def accr(dt, lt): return ACC + 4*(dt*2 + lt)
    def fA(b, dt): return FR + 28*b + 4*dt
    def fB(b, lt): return FR + 28*b + 20 + 4*lt
    def pf(c, k): return PF + 20*(c % DEP) + 4*k
    a.label("k2_kernel")
    a("""
    s_cmp_ge_u32 s2, 256
    s_cbranch_scc1 k2_end
    """)
    stamp(0)
    a("""
    s_load_dwordx2 s[4:5], s[0:1], 104
    s_load_dwordx2 s[6:7], s[0:1], 88
    v_lshrrev_b32 v5, 6, v0
    v_and_b32 v1, 63, v0
    v_and_b32 v2, 15, v1
    v_lshrrev_b32 v3, 4, v1
    v_readfirstlane_b32 s8, v5
    s_and_b32 s9, s2, 31
    s_lshr_b32 s10, s2, 5
    ; global piece offsets: row = t/8, c = t%8 : v4 = row*3456 + c*16 ; LDS: v5 = row*144 + c*16
    v_lshrrev_b32 v6, 3, v0
    v_and_b32 v7, 7, v0
    v_mul_u32_u24 v4, 0xd80, v6
    v_lshl_add_u32 v4, v7, 4, v4
    v_mul_u32_u24 v5, 144, v6
    v_lshl_add_u32 v5, v7, 4, v5
    s_mul_i32 s47, s10, 276480
    s_mul_i32 s48, s9, 221184
    s_add_u32 s36, s47, 110592          ; +32 rows
    s_add_u32 s37, s47, 221184          ; +64 rows
    s_add_u32 s38, s48, 110592
    s_lshr_b32 s11, s8, 1               ; wk
    s_and_b32 s12, s8, 1                ; wl
    v_mul_u32_u24 v8, 144, v2
    v_lshl_add_u32 v8, v3, 4, v8
    s_lshl_b32 s13, s11, 6
    v_add_u32 v8, s13, v8
    s_mul_i32 s13, s12, 4608
    v_add_u32 v9, s13, v8
    s_waitcnt lgkmcnt(0)
    """)
    srd(a, 16, 4, OFF_H, SZ_H)
    srd(a, 20, 4, OFF_W2T, SZ_W2T)
    srd(a, 24, 4, OFF_AT, SZ_AT)
    srd(a, 28, 4, OFF_G, SZ_G)
    srd(a, 32, 6, 0, L*D*2)
    for r in range(40):
        a(f"v_mov_b32 v{ACC+r}, 0")
    a("s_movk_i32 s39, 128")
    a("v_cmp_gt_u32 s[40:41], s39, v0")
    def gload(c):
        o = c * 128
        a(f"buffer_load_dwordx4 v[{pf(c,0)}:{pf(c,0)+3}], v4, s[20:23], s47 offen offset:{o}")
        a(f"buffer_load_dwordx4 v[{pf(c,1)}:{pf(c,1)+3}], v4, s[20:23], s36 offen offset:{o}")
        a(f"buffer_load_dwordx4 v[{pf(c,2)}:{pf(c,2)+3}], v4, s[20:23], s37 offen offset:{o}")
        a(f"buffer_load_dwordx4 v[{pf(c,3)}:{pf(c,3)+3}], v4, s[16:19], s48 offen offset:{o}")
        a(f"buffer_load_dwordx4 v[{pf(c,4)}:{pf(c,4)+3}], v4, s[16:19], s38 offen offset:{o}")
    def lwrite(c):
        b = (c % 3) * BUF
        a(f"ds_write_b128 v5, v[{pf(c,0)}:{pf(c,0)+3}] offset:{b}")
        a(f"ds_write_b128 v5, v[{pf(c,1)}:{pf(c,1)+3}] offset:{b + 32*RS}")
        a("s_mov_b64 s[42:43], exec")
        a("s_mov_b64 exec, s[40:41]")
        a(f"ds_write_b128 v5, v[{pf(c,2)}:{pf(c,2)+3}] offset:{b + 64*RS}")
        a("s_mov_b64 exec, s[42:43]")
        a(f"ds_write_b128 v5, v[{pf(c,3)}:{pf(c,3)+3}] offset:{b + 80*RS}")
        a(f"ds_write_b128 v5, v[{pf(c,4)}:{pf(c,4)+3}] offset:{b + 112*RS}")
    NC = 27
    def freads(c):
        b = (c % 3) * BUF
        fb_ = c % 2
        for dt in range(5):
            a(f"ds_read_b128 v[{fA(fb_,dt)}:{fA(fb_,dt)+3}], v8 offset:{b + dt*16*RS}")
        for lt in range(2):
            a(f"ds_read_b128 v[{fB(fb_,lt)}:{fB(fb_,lt)+3}], v9 offset:{b + (80 + lt*16)*RS}")
    a("""
    v_lshrrev_b32 v6, 3, v0
    v_and_b32 v7, 7, v0
    v_lshlrev_b32 v10, 12, v6
    v_lshl_add_u32 v10, v7, 4, v10
    s_mul_i32 s49, s10, 327680          ; dtile*80*4096
    s_lshl_b32 s50, s9, 7               ; ltile*64*2
    s_add_u32 s49, s49, s50
    s_add_u32 s50, s49, 131072
    s_add_u32 s51, s49, 262144
    buffer_load_dwordx4 v[236:239], v10, s[24:27], s49 offen
    buffer_load_dwordx4 v[240:243], v10, s[24:27], s50 offen
    buffer_load_dwordx4 v[244:247], v10, s[24:27], s51 offen
    """)
    for c in range(min(DEP, NC)):
        gload(c)
    a(f"s_waitcnt vmcnt({5*(DEP-1)})")
    lwrite(0)
    a(f"s_waitcnt vmcnt({5*(DEP-2)})")
    lwrite(1)
    gload(DEP)
    a("s_waitcnt lgkmcnt(0)")
    a("s_barrier")
    stamp(1)
    freads(0)
    for c in range(NC):
        fb_ = c % 2
        if c + 2 < NC:
            outstanding = max(0, min(DEP - 2, NC - 1 - (c + 2)))
            a(f"s_waitcnt vmcnt({5*outstanding})")
            lwrite(c + 2)
            if c + 1 + DEP < NC:
                gload(c + 1 + DEP)
        a(f"s_waitcnt lgkmcnt({6 if c + 2 < NC else 0})")
        if c + 1 < NC:
            freads(c + 1)
        for dt in range(5):
            for lt in range(2):
                r = accr(dt, lt)
                a(f"v_mfma_f32_16x16x32_bf16 v[{r}:{r+3}], v[{fA(fb_,dt)}:{fA(fb_,dt)+3}], v[{fB(fb_,lt)}:{fB(fb_,lt)+3}], v[{r}:{r+3}]")
        if c + 2 < NC:
            a("s_waitcnt lgkmcnt(7)")
            a("s_barrier")
    stamp(2)
    a("""
    s_lshl_b32 s49, s9, 6
    s_lshl_b32 s50, s12, 5
    s_add_u32 s49, s49, s50
    s_lshl_b32 s50, s11, 4
    s_add_u32 s49, s49, s50
    v_add_u32 v6, s49, v2
    v_lshlrev_b32 v7, 2, v6
    buffer_load_dword v10, v7, s[28:31], 0 offen
    s_mul_i32 s50, s10, 80
    v_lshlrev_b32 v11, 2, v3
    v_add_u32 v11, s50, v11
    v_lshlrev_b32 v11, 11, v11
    v_add_u32 v11, v11, v6
    v_lshlrev_b32 v11, 1, v11
    """)
    AR = 112
    a(f"""
    s_barrier
    v_lshrrev_b32 v140, 3, v0
    v_and_b32 v141, 7, v0
    v_mul_u32_u24 v11, 144, v140
    v_lshl_add_u32 v11, v141, 4, v11
    ds_write_b128 v11, v[236:239] offset:40960
    ds_write_b128 v11, v[240:243] offset:{40960 + 32*144}
    s_mov_b64 s[42:43], exec
    s_mov_b64 exec, s[40:41]
    ds_write_b128 v11, v[244:247] offset:{40960 + 64*144}
    s_mov_b64 exec, s[42:43]
    """)
    a("""
    s_nop 7
    v_lshlrev_b32 v12, 4, v1
    s_lshl_b32 s50, s8, 13
    v_add_u32 v12, s50, v12
    s_xor_b32 s51, s8, 2
    s_lshl_b32 s51, s51, 13
    v_lshlrev_b32 v13, 4, v1
    v_add_u32 v13, s51, v13
    s_cmp_eq_u32 s11, 0
    s_cbranch_scc0 k2_wk1
    """)
    for dt in range(5):
        r = accr(dt, 1)
        a(f"ds_write_b128 v12, v[{r}:{r+3}] offset:{dt*1024}")
    a("s_branch k2_wkj")
    a.label("k2_wk1")
    for dt in range(5):
        r = accr(dt, 0)
        a(f"ds_write_b128 v12, v[{r}:{r+3}] offset:{dt*1024}")
    for dt in range(5):
        for k in range(4):
            a(f"v_mov_b32 v{accr(dt,0)+k}, v{accr(dt,1)+k}")
    a.label("k2_wkj")
    a("""
    s_waitcnt lgkmcnt(0)
    s_barrier
    v_mul_u32_u24 v14, 640, v6
    s_mul_i32 s50, s10, 80
    v_lshlrev_b32 v15, 2, v3
    v_add3_u32 v14, v14, v15, s50
    v_lshlrev_b32 v14, 1, v14
    s_waitcnt vmcnt(0)
    v_sub_f32 v15, 1.0, v10
    v_cvt_pk_bf16_f32 v15, v15, v15
    v_lshlrev_b32 v15, 16, v15
    """)
    a("""
    v_mul_u32_u24 v11, 576, v3
    s_lshl_b32 s50, s12, 5
    s_lshl_b32 s51, s11, 4
    s_add_u32 s50, s50, s51
    v_add_u32 v141, s50, v2
    v_lshl_add_u32 v11, v141, 1, v11
    """)
    for dt in range(5):
        for r in range(4):
            a(f"ds_read_u16 v{AR+dt*4+r}, v11 offset:{40960 + (16*dt + r)*144}")
    P = 140
    for dt in range(5):
        a(f"ds_read_b128 v[{P+4}:{P+7}], v13 offset:{dt*1024}")
        a("s_waitcnt lgkmcnt(0)")
        r0 = accr(dt, 0)
        for r in range(4):
            a(f"v_add_f32 v{P+r}, v{r0+r}, v{P+4+r}")
        T = 156
        a(f"v_cvt_pk_bf16_f32 v{T}, v{P}, v{P+1}")
        a(f"v_cvt_pk_bf16_f32 v{T+1}, v{P+2}, v{P+3}")
        a(f"v_lshlrev_b32 v{P}, 16, v{T}")
        a(f"v_and_b32 v{P+1}, 0xffff0000, v{T}")
        a(f"v_lshlrev_b32 v{P+2}, 16, v{T+1}")
        a(f"v_and_b32 v{P+3}, 0xffff0000, v{T+1}")
        for r in range(4):
            a(f"v_mul_f32 v{P+r}, v15, v{P+r}")
        for r in range(4):
            a(f"v_lshlrev_b32 v{P+4+r}, 16, v{AR+dt*4+r}")
            a(f"v_mul_f32 v{P+4+r}, v10, v{P+4+r}")
        for k in range(2):
            for base in (P, P+4):
                a(f"v_cvt_pk_bf16_f32 v{T}, v{base+2*k}, v{base+2*k+1}")
                a(f"v_lshlrev_b32 v{base+2*k}, 16, v{T}")
                a(f"v_and_b32 v{base+2*k+1}, 0xffff0000, v{T}")
        for r in range(4):
            a(f"v_add_f32 v{P+r}, v{P+r}, v{P+4+r}")
        a(f"v_cvt_pk_bf16_f32 v{T}, v{P}, v{P+1}")
        a(f"v_cvt_pk_bf16_f32 v{T+1}, v{P+2}, v{P+3}")
        a(f"buffer_store_dwordx2 v[{T}:{T+1}], v14, s[32:35], 0 offen offset:{dt*32}")
    a("s_waitcnt vmcnt(0)")
    if STAMP2:
        stamp(3)
        for k in range(4, 7): a(f"s_mov_b32 s{70+2*k}, 0"); a(f"s_mov_b32 s{71+2*k}, 0")
        srd(a, 88, 4, 0xE00000, 1 << 20)
        a("""
        v_cmp_eq_u32 vcc, 0, v1
        s_and_saveexec_b64 s[58:59], vcc
        s_lshl_b32 s55, s2, 2
        s_add_u32 s55, s55, s8
        s_lshl_b32 s55, s55, 6
        v_mov_b32 v92, s55
        """)
        for k in range(7):
            a(f"v_mov_b32 v94, s{70+2*k}")
            a(f"v_mov_b32 v95, s{71+2*k}")
            a(f"buffer_store_dwordx2 v[94:95], v92, s[88:91], 0 offen offset:{8*k}")
        a("s_waitcnt vmcnt(0)")
    a.label("k2_end")
    a("s_endpgm")
```

```python
import sys
sys.path.insert(0, 'gen')
from common import *
import importlib
import k2
importlib.reload(k2)

NAME = "gated_mix__ssm_conv_s4d__dense_activation_silu__prompt"

def build(include_k1=True):
    hdr = open(f"cdna_kernels/{NAME}.s.ref").read().split("; Override launch")[0]
    a = Asm()
    out = hdr
    launches = []
    if include_k1:
        import k1
        importlib.reload(k1)
        launches.append(f"; @launch kernel=k1_kernel grid=({k1.K1_GRID},1,1) block=(256,1,1) lds={k1.K1_LDS}")
    launches.append(f"; @launch kernel=k2_kernel grid=(256,1,1) block=(256,1,1) lds={k2.K2_LDS}")
    out += "\n".join(launches) + "\n"
    out += '.amdgcn_target "amdgcn-amd-amdhsa--gfx950"\n.text\n'
    descs = ""
    if include_k1:
        out += ".globl k1_kernel\n.p2align 8\n.type k1_kernel,@function\n"
        a1 = Asm(); k1.gen_k1(a1); out += a1.text()
        descs += kdesc("k1_kernel", k1.K1_VGPR, 100)
    out += ".globl k2_kernel\n.p2align 8\n.type k2_kernel,@function\n"
    a2 = Asm(); k2.gen_k2(a2); out += a2.text()
    descs += kdesc("k2_kernel", k2.K2_VGPR, 100)
    out += '.section .rodata,"a"\n.p2align 6\n' + descs
    return out

if __name__ == "__main__":
    inc = "--nok1" not in sys.argv
    s = build(inc)
    outp = f"cdna_kernels/{NAME}.s"
    for i, x in enumerate(sys.argv):
        if x == "-o": outp = sys.argv[i+1]
    open(outp, "w").write(s)
    print("written", len(s))
```

```python
from common import *

def gen(a, base_id):
    ACC = 16
    XR = 64
    WR = 96
    AF = 108
    def acc(tf): return ACC + 16*tf
    def xr(buf, ks): return XR + 16*buf + 4*ks
    def af(b, tf): return AF + 4*tf
    a(f"""
    s_load_dwordx2 s[4:5], s[0:1], {KA['u']}
    s_load_dwordx2 s[6:7], s[0:1], {KA['w1']}
    s_load_dwordx2 s[8:9], s[0:1], {KA['ws']}
    v_lshrrev_b32 v7, 6, v0
    v_and_b32 v1, 63, v0
    v_and_b32 v2, 15, v1
    v_lshrrev_b32 v3, 4, v1
    v_lshrrev_b32 v4, 5, v1
    v_and_b32 v5, 31, v1
    v_readfirstlane_b32 s10, v7
    s_sub_u32 s11, s2, {base_id}
    ; ltile = s11 / 18 ; ft = s11 % 18
    s_mul_i32 s12, s11, 3641
    s_lshr_b32 s12, s12, 16
    s_mul_i32 s13, s12, 18
    s_sub_u32 s11, s11, s13
    v_lshrrev_b32 v6, 2, v2
    v_lshl_add_u32 v6, v4, 3, v6
    v_mul_u32_u24 v6, 192, v6
    v_and_b32 v7, 1, v3
    v_lshl_add_u32 v6, v7, 5, v6
    v_and_b32 v7, 3, v2
    v_lshl_add_u32 v6, v7, 3, v6
    v_mul_u32_u24 v15, 1280, v5
    v_lshl_add_u32 v15, v4, 4, v15
    v_lshlrev_b32 v14, 4, v0
    """)
    for s6 in range(3):
        a(f"""
        v_add_u32 v7, {256*s6}, v0
        v_mul_u32_u24 v{8+s6}, 43691, v7
        v_lshrrev_b32 v{8+s6}, 19, v{8+s6}
        v_mul_u32_u24 v16, 12, v{8+s6}
        v_sub_u32 v16, v7, v16
        v_mul_u32_u24 v{8+s6}, 0xd80, v{8+s6}
        v_lshl_add_u32 v{8+s6}, v16, 4, v{8+s6}
        """)
    a(f"""
    s_lshl_b32 s13, s12, 7
    s_lshl_b32 s14, s10, 5
    s_add_u32 s13, s13, s14
    s_mul_i32 s13, s13, 1280
    s_mul_i32 s14, s11, 192           ; f0*2
    s_waitcnt lgkmcnt(0)
    """)
    srd(a, 16, 4, 0, L*D*2)
    srd(a, 20, 6, 0, D*F*2)
    srd(a, 24, 8, OFF_H, SZ_H)
    for r in range(48):
        a(f"v_mov_b32 v{ACC+r}, 0")
    def load(c):
        for ks in range(4):
            a(f"buffer_load_dwordx4 v[{xr(c%2,ks)}:{xr(c%2,ks)+3}], v15, s[16:19], s13 offen offset:{c*128+ks*32}")
        a(f"s_add_u32 s15, s14, {c*221184}")
        for s6 in range(3):
            a(f"buffer_load_dwordx4 v[{WR+4*s6}:{WR+4*s6+3}], v{8+s6}, s[20:23], s15 offen")
    def stage(c):
        a("s_waitcnt vmcnt(0)")
        for s6 in range(3):
            a(f"ds_write_b128 v14, v[{WR+4*s6}:{WR+4*s6+3}] offset:{(c%2)*12288 + s6*4096}")
        a("s_waitcnt lgkmcnt(0)")
        a("s_barrier")
    def reads(c, ks):
        for tf in range(3):
            off = (c%2)*12288 + ks*3072 + tf*64
            a(f"ds_read_b64_tr_b16 v[{af(0,tf)}:{af(0,tf)+1}], v6 offset:{off}")
            a(f"ds_read_b64_tr_b16 v[{af(0,tf)+2}:{af(0,tf)+3}], v6 offset:{off+768}")
    load(0); stage(0)
    for c in range(10):
        if c < 9: load(c+1)
        for ks in range(4):
            reads(c, ks)
            a("s_waitcnt lgkmcnt(0)")
            for tf in range(3):
                a(f"v_mfma_f32_32x32x16_bf16 v[{acc(tf)}:{acc(tf)+15}], v[{af(0,tf)}:{af(0,tf)+3}], v[{xr(c%2,ks)}:{xr(c%2,ks)+3}], v[{acc(tf)}:{acc(tf)+15}]")
        if c < 9: stage(c+1)
    a(f"""
    s_lshl_b32 s13, s12, 7
    s_lshl_b32 s15, s10, 5
    s_add_u32 s13, s13, s15
    v_add_u32 v7, s13, v5
    v_mul_u32_u24 v7, 0xd80, v7
    v_add_u32 v7, s14, v7
    v_lshl_add_u32 v7, v4, 3, v7
    s_mov_b32 s15, 0xbfb8aa3b      ; -log2(e)
    s_nop 7
    s_nop 7
    """)
    T = 64
    for tf in range(3):
        for k4 in range(4):
            r0 = acc(tf) + 4*k4
            a(f"""
            v_cvt_pk_bf16_f32 v{T}, v{r0}, v{r0+1}
            v_cvt_pk_bf16_f32 v{T+1}, v{r0+2}, v{r0+3}
            v_lshlrev_b32 v{T+2}, 16, v{T}
            v_and_b32 v{T+3}, 0xffff0000, v{T}
            v_lshlrev_b32 v{T+4}, 16, v{T+1}
            v_and_b32 v{T+5}, 0xffff0000, v{T+1}
            v_mul_f32 v{T+6}, s15, v{T+2}
            v_mul_f32 v{T+7}, s15, v{T+3}
            v_mul_f32 v{T+8}, s15, v{T+4}
            v_mul_f32 v{T+9}, s15, v{T+5}
            v_exp_f32 v{T+6}, v{T+6}
            v_exp_f32 v{T+7}, v{T+7}
            v_exp_f32 v{T+8}, v{T+8}
            v_exp_f32 v{T+9}, v{T+9}
            v_add_f32 v{T+6}, 1.0, v{T+6}
            v_add_f32 v{T+7}, 1.0, v{T+7}
            v_add_f32 v{T+8}, 1.0, v{T+8}
            v_add_f32 v{T+9}, 1.0, v{T+9}
            v_rcp_f32 v{T+6}, v{T+6}
            v_rcp_f32 v{T+7}, v{T+7}
            v_rcp_f32 v{T+8}, v{T+8}
            v_rcp_f32 v{T+9}, v{T+9}
            v_mul_f32 v{T+2}, v{T+2}, v{T+6}
            v_mul_f32 v{T+3}, v{T+3}, v{T+7}
            v_mul_f32 v{T+4}, v{T+4}, v{T+8}
            v_mul_f32 v{T+5}, v{T+5}, v{T+9}
            v_cvt_pk_bf16_f32 v{T+10}, v{T+2}, v{T+3}
            v_cvt_pk_bf16_f32 v{T+11}, v{T+4}, v{T+5}
            buffer_store_dwordx2 v[{T+10}:{T+11}], v7, s[24:27], 0 offen offset:{tf*64 + k4*16}
            """)
    a("s_waitcnt vmcnt(0)")
    a("s_endpgm")
```

```python
from common import *

R_OFF = 0
KH_OFF = 4352
KL_OFF = 12032
KT_OFF = 19712
YP_OFF = 4352
DEBUG = False
DBG_CH = 5

STAMP = False
def gen(a):
    def stamp(k):
        if STAMP:
            a(f's_memtime s[{70+2*k}:{71+2*k}]')
            a('s_waitcnt lgkmcnt(0)')
    stamp(0)
    a(f"""
    s_load_dwordx2 s[4:5], s[0:1], {KA['u']}
    s_load_dwordx2 s[6:7], s[0:1], {KA['lar']}
    s_load_dwordx2 s[8:9], s[0:1], {KA['aim']}
    s_load_dwordx2 s[10:11], s[0:1], {KA['cre']}
    s_load_dwordx2 s[12:13], s[0:1], {KA['cim']}
    s_load_dwordx2 s[14:15], s[0:1], {KA['ldt']}
    s_load_dwordx2 s[50:51], s[0:1], {KA['dsk']}
    s_load_dwordx2 s[52:53], s[0:1], {KA['ws']}
    v_lshrrev_b32 v7, 6, v0
    v_and_b32 v1, 63, v0
    v_and_b32 v2, 15, v1
    v_lshrrev_b32 v3, 4, v1
    v_lshrrev_b32 v4, 5, v1
    v_and_b32 v5, 31, v1
    v_readfirstlane_b32 s3, v7
    s_waitcnt lgkmcnt(0)
    """)
    srd(a, 16, 4, 0, L*D*2)
    srd(a, 20, 6, 0, D*N*2)
    srd(a, 24, 8, 0, D*N*2)
    srd(a, 28, 10, 0, D*N*2)
    srd(a, 32, 12, 0, D*N*2)
    srd(a, 36, 14, 0, D*2)
    srd(a, 40, 50, 0, D*2)
    srd(a, 44, 52, OFF_AT, SZ_AT)
    a(f"""
    v_mul_u32_u24 v7, 1280, v0
    s_lshl_b32 s54, s2, 1
    """)
    for i in range(8):
        a(f"s_add_u32 s55, s54, {i*256*1280}")
        a(f"buffer_load_ushort v{114+i}, v7, s[16:19], s55 offen")
    a(f"""
    s_lshl_b32 s55, s2, 8
    s_lshl_b32 s56, s3, 6
    s_add_u32 s55, s55, s56
    v_lshlrev_b32 v7, 3, v3
    """)
    for ai, sr in enumerate((20, 24, 28, 32)):
        for s in range(2):
            a(f"buffer_load_dwordx2 v[{16+4*ai+2*s}:{16+4*ai+2*s+1}], v7, s[{sr}:{sr+3}], s55 offen offset:{32*s}")
    a(f"""
    v_mov_b32 v7, s54
    buffer_load_ushort v14, v7, s[36:39], 0 offen
    buffer_load_ushort v15, v7, s[40:43], 0 offen
    v_mov_b32 v92, 0
    v_mov_b32 v93, 0
    v_mov_b32 v94, 0
    v_mov_b32 v95, 0
    v_lshlrev_b32 v7, 4, v0
    ds_write_b128 v7, v[92:95] offset:{KH_OFF}
    ds_write_b128 v7, v[92:95] offset:{KL_OFF}
    v_cmp_gt_u32 vcc, 4, v0
    s_and_saveexec_b64 s[58:59], vcc
    ds_write_b128 v7, v[92:95] offset:{R_OFF+4096}
    s_mov_b64 exec, s[58:59]
    s_mov_b32 s60, 0x3fb8aa3b       ; log2(e)
    s_mov_b32 s61, 0xbfb8aa3b       ; -log2(e)
    s_mov_b32 s62, 0x3e22f983       ; 1/(2pi)
    s_mov_b32 s63, 0x7fff
    s_mov_b32 s64, 384
    s_mov_b32 s65, 256
    s_waitcnt vmcnt(0)
    """)
    stamp(1)
    a("v_lshlrev_b32 v7, 1, v0")
    a(f"v_sub_u32 v7, {R_OFF + 4094}, v7")
    for i in range(8):
        a(f"v_subrev_u32 v92, {512*i}, v7")
        a(f"ds_write_b16 v92, v{114+i}")
    a("""
    v_lshlrev_b32 v14, 16, v14
    v_mul_f32 v14, s60, v14
    v_exp_f32 v14, v14
    v_lshlrev_b32 v15, 16, v15
    v_cvt_pk_bf16_f32 v14, v14, v14
    v_lshlrev_b32 v14, 16, v14
    """)
    for s in range(2):
        for t in range(4):
            k = 4*s + t
            src = lambda ai: 16 + 4*ai + 2*s + t//2
            ext = (lambda dst, r: f"v_lshlrev_b32 v{dst}, 16, v{r}") if t % 2 == 0 else (lambda dst, r: f"v_and_b32 v{dst}, 0xffff0000, v{r}")
            a(ext(92, src(0)))
            a(f"""
            v_mul_f32 v92, s60, v92
            v_exp_f32 v92, v92
            """)
            a(ext(93, src(1)))
            a(ext(94, src(2)))
            a(ext(95, src(3)))
            a(f"""
            v_cvt_pk_bf16_f32 v92, v92, v92
            v_lshlrev_b32 v92, 16, v92
            v_mul_f32 v92, v92, v14
            v_mul_f32 v{32+k}, s61, v92
            v_mul_f32 v93, v93, v14
            v_mul_f32 v{40+k}, s62, v93
            v_mul_f32 v94, v94, v14
            v_add_f32 v{48+k}, v94, v94
            v_mul_f32 v95, v95, v14
            v_add_f32 v{56+k}, v95, v95
            """)
    for r in range(12):
        a(f"v_mov_b32 v{64+r}, 0")
    for T in range(3):
        if T == 0:
            a("v_lshlrev_b32 v112, 4, v2")
            a("v_mov_b32 v113, v2")
        elif T == 1:
            a("""
            v_lshrrev_b32 v112, 1, v2
            v_lshlrev_b32 v112, 6, v112
            v_and_b32 v113, 1, v2
            v_lshl_add_u32 v112, v113, 1, v112
            v_add_u32 v112, 0x100, v112
            v_subrev_u32 v113, 8, v2
            v_lshlrev_b32 v113, 6, v113
            v_add_u32 v113, 0x200, v113
            v_cmp_gt_u32 vcc, 8, v2
            s_nop 1
            v_cndmask_b32 v112, v113, v112, vcc
            v_lshlrev_b32 v113, 2, v2
            """)
        else:
            a("""
            v_lshlrev_b32 v112, 7, v2
            v_add_u32 v112, 0x400, v112
            v_lshlrev_b32 v113, 3, v2
            """)
        a("v_cvt_f32_u32 v112, v112")
        a("v_cvt_f32_u32 v113, v113")
        for s in range(2):
            for t in range(4):
                k = 4*s + t
                a(f"""
                v_mul_f32 v92, v{32+k}, v112
                v_mul_f32 v93, v{40+k}, v112
                v_mul_f32 v96, v{32+k}, v113
                v_mul_f32 v97, v{40+k}, v113
                v_exp_f32 v92, v92
                v_fract_f32 v93, v93
                v_exp_f32 v96, v96
                v_fract_f32 v97, v97
                v_cos_f32 v94, v93
                v_sin_f32 v95, v93
                v_cos_f32 v98, v97
                v_sin_f32 v99, v97
                s_nop 0
                v_mul_f32 v94, v92, v94
                v_mul_f32 v95, v92, v95
                v_mul_f32 v98, v96, v98
                v_mul_f32 v99, v96, v99
                v_mul_f32 v100, v{48+k}, v94
                v_mul_f32 v101, v{48+k}, v95
                v_fma_f32 v100, -v{56+k}, v95, v100
                v_fma_f32 v101, v{56+k}, v94, v101
                v_sub_f32 v101, 0, v101
                v_cvt_pk_bf16_f32 v{76+t}, v100, v101
                v_cvt_pk_bf16_f32 v{84+t}, v98, v99
                v_lshlrev_b32 v102, 16, v{76+t}
                v_and_b32 v103, 0xffff0000, v{76+t}
                v_lshlrev_b32 v104, 16, v{84+t}
                v_and_b32 v105, 0xffff0000, v{84+t}
                v_sub_f32 v100, v100, v102
                v_sub_f32 v101, v101, v103
                v_sub_f32 v98, v98, v104
                v_sub_f32 v99, v99, v105
                v_cvt_pk_bf16_f32 v{80+t}, v100, v101
                v_cvt_pk_bf16_f32 v{88+t}, v98, v99
                """)
            ac = 64 + 4*T
            a("s_nop 1")
            a(f"v_mfma_f32_16x16x32_bf16 v[{ac}:{ac+3}], v[76:79], v[84:87], v[{ac}:{ac+3}]")
            a(f"v_mfma_f32_16x16x32_bf16 v[{ac}:{ac+3}], v[76:79], v[88:91], v[{ac}:{ac+3}]")
            a(f"v_mfma_f32_16x16x32_bf16 v[{ac}:{ac+3}], v[80:83], v[84:87], v[{ac}:{ac+3}]")
    stamp(2)
    a(f"""
    v_lshlrev_b32 v92, 6, v3
    v_add_u32 v92, v92, v2
    v_lshlrev_b32 v92, 4, v92
    s_lshl_b32 s55, s3, 2
    v_add_u32 v92, s55, v92
    s_nop 7
    s_nop 3
    """)
    for T in range(3):
        for r in range(4):
            a(f"ds_write_b32 v92, v{64+4*T+r} offset:{KT_OFF + T*4096 + r*256}")
    a("s_waitcnt lgkmcnt(0)")
    a("s_barrier")
    stamp(3)
    for e in range(8):
        a(f"""
        v_lshlrev_b32 v92, 3, v0
        v_add_u32 v92, {e}, v92
        v_cvt_f32_u32 v93, v92
        v_bfe_u32 v94, v93, 16, 1
        v_add3_u32 v93, v93, v94, s63
        v_lshrrev_b32 v94, 23, v93
        v_bfe_u32 v95, v93, 16, 7
        ; case E>=136
        v_subrev_u32 v96, 136, v94
        v_lshlrev_b32 v96, 7, v96
        v_add3_u32 v96, v96, v95, s64
        ; case E==135
        v_and_b32 v97, 96, v95
        v_and_b32 v98, 1, v95
        v_lshl_add_u32 v97, v98, 4, v97
        v_bfe_u32 v98, v95, 1, 4
        v_add3_u32 v97, v97, v98, s65
        v_cmp_eq_u32 vcc, 135, v94
        s_nop 1
        v_cndmask_b32 v96, v96, v97, vcc
        v_cmp_gt_u32 vcc, 135, v94
        s_nop 1
        v_cndmask_b32 v96, v96, v92, vcc
        v_lshlrev_b32 v96, 4, v96
        ds_read_b128 v[{16+4*e}:{16+4*e+3}], v96 offset:{KT_OFF}
        """)
    a("s_waitcnt lgkmcnt(0)")
    for e in range(8):
        b = 16 + 4*e
        a(f"v_add_f32 v{b}, v{b}, v{b+1}")
        a(f"v_add_f32 v{b+2}, v{b+2}, v{b+3}")
        a(f"v_add_f32 v{b}, v{b}, v{b+2}")
    for e2 in range(4):
        b0 = 16 + 8*e2; b1 = b0 + 4
        a(f"""
        v_cvt_pk_bf16_f32 v{48+e2}, v{b0}, v{b1}
        v_lshlrev_b32 v92, 16, v{48+e2}
        v_and_b32 v93, 0xffff0000, v{48+e2}
        v_sub_f32 v92, v{b0}, v92
        v_sub_f32 v93, v{b1}, v93
        v_cvt_pk_bf16_f32 v{52+e2}, v92, v93
        """)
    a(f"""
    v_lshrrev_b32 v92, 2, v0
    v_mul_u32_u24 v92, 80, v92
    v_and_b32 v93, 3, v0
    v_lshl_add_u32 v92, v93, 4, v92
    ds_write_b128 v92, v[48:51] offset:{KH_OFF + 31*80}
    ds_write_b128 v92, v[52:55] offset:{KL_OFF + 31*80}
    s_waitcnt lgkmcnt(0)
    s_barrier
    """)
    if DEBUG:
        srd(a, 68, 52, 0xE00000, 65536)
        a(f"""
        s_cmp_lg_u32 s2, {DBG_CH}
        s_cbranch_scc1 k1_ssm_nodbg
        v_lshlrev_b32 v92, 4, v0
        """)
        for i in range(8):
            a(f"ds_read_b128 v[100:103], v92 offset:{i*4096}")
            a(f"v_add_u32 v93, {i*4096}, v92")
            a("s_waitcnt lgkmcnt(0)")
            a(f"buffer_store_dwordx4 v[100:103], v93, s[68:71], 0 offen")
            a("s_waitcnt vmcnt(0)")
        a.label("k1_ssm_nodbg")
    stamp(4)
    ACC = 16
    for r in range(32):
        a(f"v_mov_b32 v{ACC+r}, 0")
    a(f"""
    v_lshlrev_b32 v6, 1, v5
    v_sub_u32 v6, {R_OFF + 4094}, v6
    v_lshl_add_u32 v6, v4, 4, v6
    s_lshl_b32 s55, s3, 6
    v_subrev_u32 v6, s55, v6
    v_mul_u32_u24 v7, 80, v5
    v_lshl_add_u32 v7, v4, 4, v7
    v_add_u32 v7, {31*80}, v7
    s_mul_i32 s55, s3, 80
    v_subrev_u32 v7, s55, v7
    """)
    ST = 48
    def afr(st, ks): return ST + 40*st + 4*ks
    def bfr(st, c, part, ks): return ST + 40*st + 8 + 16*c + 8*part + 4*ks
    def reads(dd):
        st = dd % 2
        a(f"v_subrev_u32 v8, {256*dd}, v6")
        a(f"v_subrev_u32 v9, {320*dd}, v7")
        for ks in range(2):
            a(f"ds_read_b128 v[{afr(st,ks)}:{afr(st,ks)+3}], v8 offset:{32*ks}")
        for c in ([0, 1] if dd < 8 else [1]):
            for part in range(2):
                for ks in range(2):
                    off = (KH_OFF if part == 0 else KL_OFF) + 2560*c + 32*ks
                    a(f"ds_read_b128 v[{bfr(st,c,part,ks)}:{bfr(st,c,part,ks)+3}], v9 offset:{off}")
    reads(0)
    for dd in range(16):
        st = dd % 2
        if dd < 15:
            reads(dd + 1)
            a(f"s_waitcnt lgkmcnt({10 if dd + 1 < 8 else 6})")
        else:
            a("s_waitcnt lgkmcnt(0)")
        for c in ([0, 1] if dd < 8 else [1]):
            for part in range(2):
                for ks in range(2):
                    ac = ACC + 16*c
                    a(f"v_mfma_f32_32x32x16_bf16 v[{ac}:{ac+15}], v[{afr(st,ks)}:{afr(st,ks)+3}], v[{bfr(st,c,part,ks)}:{bfr(st,c,part,ks)+3}], v[{ac}:{ac+15}]")
    stamp(5)
    a(f"""
    v_lshlrev_b32 v8, 4, v1
    s_lshl_b32 s55, s3, 13
    v_add_u32 v8, s55, v8
    s_barrier
    s_nop 7
    s_nop 7
    """)
    for c in range(2):
        for k4 in range(4):
            r0 = ACC + 16*c + 4*k4
            a(f"ds_write_b128 v8, v[{r0}:{r0+3}] offset:{YP_OFF + (c*4 + k4)*1024}")
    a(f"""
    s_waitcnt lgkmcnt(0)
    s_barrier
    s_lshr_b32 s55, s3, 1           ; c
    s_and_b32 s56, s3, 1
    s_lshl_b32 s56, s56, 1          ; k4 base
    s_lshl_b32 s57, s55, 2
    s_add_u32 s57, s57, s56         ; c*4 + k4base
    s_lshl_b32 s57, s57, 10
    v_lshlrev_b32 v8, 4, v1
    v_add_u32 v8, s57, v8
    ; l = 32*(32c + jj) + 8*k4 + 4h
    s_lshl_b32 s57, s55, 10
    s_lshl_b32 s58, s56, 3
    s_add_u32 s57, s57, s58
    v_lshlrev_b32 v9, 5, v5
    v_lshl_add_u32 v9, v4, 2, v9
    v_add_u32 v9, s57, v9
    v_lshlrev_b32 v10, 1, v9
    v_sub_u32 v10, {R_OFF + 4088}, v10
    v_subrev_u32 v11, 16, v10
    ds_read_b64 v[60:61], v10
    ds_read_b64 v[62:63], v11
    s_lshl_b32 s57, s2, 12
    v_lshlrev_b32 v12, 1, v9
    v_add_u32 v12, s57, v12
    """)
    for kk in range(2):
        P = 64
        for ww in range(4):
            a(f"ds_read_b128 v[{P+4*ww}:{P+4*ww+3}], v8 offset:{YP_OFF + ww*8192 + kk*1024}")
        a("s_waitcnt lgkmcnt(0)")
        for r in range(4):
            a(f"v_add_f32 v{P+r}, v{P+r}, v{P+4+r}")
            a(f"v_add_f32 v{P+8+r}, v{P+8+r}, v{P+12+r}")
        for r in range(4):
            a(f"v_add_f32 v{P+r}, v{P+r}, v{P+8+r}")
        ur = 60 + 2*kk
        a(f"""
        v_cvt_pk_bf16_f32 v80, v{P}, v{P+1}
        v_cvt_pk_bf16_f32 v81, v{P+2}, v{P+3}
        v_lshlrev_b32 v{P}, 16, v80
        v_and_b32 v{P+1}, 0xffff0000, v80
        v_lshlrev_b32 v{P+2}, 16, v81
        v_and_b32 v{P+3}, 0xffff0000, v81
        v_and_b32 v82, 0xffff0000, v{ur+1}
        v_lshlrev_b32 v83, 16, v{ur+1}
        v_and_b32 v84, 0xffff0000, v{ur}
        v_lshlrev_b32 v85, 16, v{ur}
        v_mul_f32 v82, v82, v15
        v_mul_f32 v83, v83, v15
        v_mul_f32 v84, v84, v15
        v_mul_f32 v85, v85, v15
        v_cvt_pk_bf16_f32 v80, v82, v83
        v_cvt_pk_bf16_f32 v81, v84, v85
        v_lshlrev_b32 v82, 16, v80
        v_and_b32 v83, 0xffff0000, v80
        v_lshlrev_b32 v84, 16, v81
        v_and_b32 v85, 0xffff0000, v81
        v_add_f32 v82, v82, v{P}
        v_add_f32 v83, v83, v{P+1}
        v_add_f32 v84, v84, v{P+2}
        v_add_f32 v85, v85, v{P+3}
        v_cvt_pk_bf16_f32 v80, v82, v83
        v_cvt_pk_bf16_f32 v81, v84, v85
        buffer_store_dwordx2 v[80:81], v12, s[44:47], 0 offen offset:{16*kk}
        """)
    a("s_waitcnt vmcnt(0)")
    if STAMP:
        stamp(6)
        srd(a, 88, 52, 0xE00000, 1 << 20)
        a("""
        v_cmp_eq_u32 vcc, 0, v1
        s_and_saveexec_b64 s[58:59], vcc
        s_lshl_b32 s55, s2, 2
        s_add_u32 s55, s55, s3
        s_lshl_b32 s55, s55, 6
        v_mov_b32 v92, s55
        """)
        for k in range(7):
            a(f"v_mov_b32 v94, s{70+2*k}")
            a(f"v_mov_b32 v95, s{71+2*k}")
            a(f"buffer_store_dwordx2 v[94:95], v92, s[88:91], 0 offen offset:{8*k}")
        a("s_waitcnt vmcnt(0)")
    a("s_endpgm")
```

```python
from common import *
import os
G1_STAMP = os.environ.get('G1_STAMP') == '1'

def gen(a, base_id):
    ACC = 16
    SET = 64
    AF = 112
    BF0 = 124
    BF1 = 8
    NCH = 20
    BUF = 16384
    WOFF = 10240
    def stamp(k, rt=False):
        if G1_STAMP:
            a(f"{'s_memrealtime' if rt else 's_memtime'} s[{70+2*k}:{71+2*k}]")
            a('s_waitcnt lgkmcnt(0)')
    stamp(0); stamp(5, True)
    def acc(tf): return ACC + 16*tf
    def st(c, j): return SET + 16*(c % 3) + 4*j
    def af(tf): return AF + 4*tf
    a(f"""
    s_load_dwordx2 s[4:5], s[0:1], {KA['u']}
    s_load_dwordx2 s[6:7], s[0:1], {KA['w1']}
    s_load_dwordx2 s[8:9], s[0:1], {KA['ws']}
    v_lshrrev_b32 v7, 6, v0
    v_and_b32 v1, 63, v0
    v_and_b32 v2, 15, v1
    v_lshrrev_b32 v3, 4, v1
    v_lshrrev_b32 v4, 5, v1
    v_and_b32 v5, 31, v1
    v_readfirstlane_b32 s10, v7
    s_sub_u32 s11, s2, {base_id}
    ; ltile = s11 / 18 ; ft = s11 % 18
    s_mul_i32 s12, s11, 3641
    s_lshr_b32 s12, s12, 16
    s_mul_i32 s13, s12, 18
    s_sub_u32 s11, s11, s13
    v_lshrrev_b32 v6, 2, v2
    v_lshl_add_u32 v6, v4, 3, v6
    v_mul_u32_u24 v6, 192, v6
    v_and_b32 v7, 1, v3
    v_lshl_add_u32 v6, v7, 5, v6
    v_and_b32 v7, 3, v2
    v_lshl_add_u32 v6, v7, 3, v6
    s_lshl_b32 s13, s10, 5
    v_add_u32 v15, s13, v5
    v_mul_u32_u24 v15, 80, v15
    v_lshl_add_u32 v15, v4, 4, v15
    ; x global piece v12 = (tid/4)*1280 + (tid%4)*16 ; LDS addr v13 = (tid/4)*80 + (tid%4)*16
    v_lshrrev_b32 v7, 2, v0
    v_and_b32 v3, 3, v0
    v_lshlrev_b32 v3, 4, v3
    v_mul_u32_u24 v12, 1280, v7
    v_add_u32 v12, v12, v3
    v_mul_u32_u24 v13, 80, v7
    v_add_u32 v13, v13, v3
    v_lshlrev_b32 v14, 4, v0
    v_and_b32 v3, 127, v0
    v_lshlrev_b32 v2, 4, v3
    v_add_u32 v3, 256, v3
    """)
    for dst, src in ((1, 0), (3, 3)):
        a(f"""
        v_mul_u32_u24 v7, 43691, v{src}
        v_lshrrev_b32 v7, 19, v7
        v_mul_u32_u24 v16, 12, v7
        v_sub_u32 v16, v{src}, v16
        v_mul_u32_u24 v7, 0xd80, v7
        v_lshl_add_u32 v{dst}, v16, 4, v7
        """)
    a(f"""
    s_mul_i32 s13, s12, {128*1280}
    s_add_u32 s28, s13, {64*1280}
    s_mul_i32 s14, s11, 192           ; f0*2
    s_waitcnt lgkmcnt(0)
    """)
    srd(a, 16, 4, 0, L*D*2)
    srd(a, 20, 6, 0, D*F*2)
    srd(a, 24, 8, OFF_H, SZ_H)
    for r in range(48):
        a(f"v_mov_b32 v{ACC+r}, 0")
    def load(c):
        a(f"buffer_load_dwordx4 v[{st(c,0)}:{st(c,0)+3}], v12, s[16:19], s13 offen offset:{c*64}")
        a(f"buffer_load_dwordx4 v[{st(c,1)}:{st(c,1)+3}], v12, s[16:19], s28 offen offset:{c*64}")
        a(f"s_add_u32 s15, s14, {c*32*3456}")
        a(f"buffer_load_dwordx4 v[{st(c,2)}:{st(c,2)+3}], v1, s[20:23], s15 offen")
        a(f"buffer_load_dwordx4 v[{st(c,3)}:{st(c,3)+3}], v3, s[20:23], s15 offen")
    def stage(c):
        later = 4 * (min(c + 2, NCH - 1) - c)
        a(f"s_waitcnt vmcnt({later})")
        b = (c % 2) * BUF
        a(f"ds_write_b128 v13, v[{st(c,0)}:{st(c,0)+3}] offset:{b}")
        a(f"ds_write_b128 v13, v[{st(c,1)}:{st(c,1)+3}] offset:{b + 64*80}")
        a(f"ds_write_b128 v14, v[{st(c,2)}:{st(c,2)+3}] offset:{b + WOFF}")
        a(f"ds_write_b128 v2, v[{st(c,3)}:{st(c,3)+3}] offset:{b + WOFF + 4096}")
        if c + 3 < NCH: load(c + 3)
        a("s_waitcnt lgkmcnt(0)")
        a("s_barrier")
    def rdA(c, ks, tf):
        off = (c % 2) * BUF + WOFF + ks*3072 + tf*64
        a(f"ds_read_b64_tr_b16 v[{af(tf)}:{af(tf)+1}], v6 offset:{off}")
        a(f"ds_read_b64_tr_b16 v[{af(tf)+2}:{af(tf)+3}], v6 offset:{off+768}")
    stamp(1)
    load(0); load(1); load(2); stage(0)
    stamp(2)
    for c in range(NCH):
        b = (c % 2) * BUF
        a(f"ds_read_b128 v[{BF0}:{BF0+3}], v15 offset:{b}")
        for tf in range(3): rdA(c, 0, tf)
        a(f"ds_read_b128 v[{BF1}:{BF1+3}], v15 offset:{b + 32}")
        for tf in range(3):
            a("s_waitcnt lgkmcnt(5)")
            a(f"v_mfma_f32_32x32x16_bf16 v[{acc(tf)}:{acc(tf)+15}], v[{af(tf)}:{af(tf)+3}], v[{BF0}:{BF0+3}], v[{acc(tf)}:{acc(tf)+15}]")
            rdA(c, 1, tf)
        for tf in range(3):
            a(f"s_waitcnt lgkmcnt({2*(2 - tf)})")
            a(f"v_mfma_f32_32x32x16_bf16 v[{acc(tf)}:{acc(tf)+15}], v[{af(tf)}:{af(tf)+3}], v[{BF1}:{BF1+3}], v[{acc(tf)}:{acc(tf)+15}]")
        if c + 1 < NCH: stage(c + 1)
    stamp(3)
    a(f"""
    s_lshl_b32 s13, s12, 7
    s_lshl_b32 s15, s10, 5
    s_add_u32 s13, s13, s15
    v_add_u32 v7, s13, v5
    v_mul_u32_u24 v7, 0xd80, v7
    v_add_u32 v7, s14, v7
    v_lshl_add_u32 v7, v4, 3, v7
    s_mov_b32 s15, 0xbfb8aa3b      ; -log2(e)
    s_nop 7
    s_nop 7
    """)
    T = 64
    for tf in range(3):
        for k4 in range(4):
            r0 = acc(tf) + 4*k4
            a(f"""
            v_cvt_pk_bf16_f32 v{T}, v{r0}, v{r0+1}
            v_cvt_pk_bf16_f32 v{T+1}, v{r0+2}, v{r0+3}
            v_lshlrev_b32 v{T+2}, 16, v{T}
            v_and_b32 v{T+3}, 0xffff0000, v{T}
            v_lshlrev_b32 v{T+4}, 16, v{T+1}
            v_and_b32 v{T+5}, 0xffff0000, v{T+1}
            v_mul_f32 v{T+6}, s15, v{T+2}
            v_mul_f32 v{T+7}, s15, v{T+3}
            v_mul_f32 v{T+8}, s15, v{T+4}
            v_mul_f32 v{T+9}, s15, v{T+5}
            v_exp_f32 v{T+6}, v{T+6}
            v_exp_f32 v{T+7}, v{T+7}
            v_exp_f32 v{T+8}, v{T+8}
            v_exp_f32 v{T+9}, v{T+9}
            v_add_f32 v{T+6}, 1.0, v{T+6}
            v_add_f32 v{T+7}, 1.0, v{T+7}
            v_add_f32 v{T+8}, 1.0, v{T+8}
            v_add_f32 v{T+9}, 1.0, v{T+9}
            v_rcp_f32 v{T+6}, v{T+6}
            v_rcp_f32 v{T+7}, v{T+7}
            v_rcp_f32 v{T+8}, v{T+8}
            v_rcp_f32 v{T+9}, v{T+9}
            v_mul_f32 v{T+2}, v{T+2}, v{T+6}
            v_mul_f32 v{T+3}, v{T+3}, v{T+7}
            v_mul_f32 v{T+4}, v{T+4}, v{T+8}
            v_mul_f32 v{T+5}, v{T+5}, v{T+9}
            v_cvt_pk_bf16_f32 v{T+10}, v{T+2}, v{T+3}
            v_cvt_pk_bf16_f32 v{T+11}, v{T+4}, v{T+5}
            buffer_store_dwordx2 v[{T+10}:{T+11}], v7, s[24:27], 0 offen offset:{tf*64 + k4*16}
            """)
    a("s_waitcnt vmcnt(0)")
    if G1_STAMP:
        stamp(4); stamp(6, True)
        srd(a, 88, 8, 0xE00000, 1 << 20)
        a(f"""
        v_and_b32 v1, 63, v0
        v_cmp_eq_u32 vcc, 0, v1
        s_and_saveexec_b64 s[58:59], vcc
        s_sub_u32 s55, s2, {base_id}
        s_lshl_b32 s55, s55, 2
        s_add_u32 s55, s55, s10
        s_lshl_b32 s55, s55, 6
        v_mov_b32 v92, s55
        """)
        for k in range(7):
            a(f"v_mov_b32 v94, s{70+2*k}")
            a(f"v_mov_b32 v95, s{71+2*k}")
            a(f"buffer_store_dwordx2 v[94:95], v92, s[88:91], 0 offen offset:{8*k}")
        a("s_waitcnt vmcnt(0)")
    a("s_endpgm")
```

```python
from common import *

R_OFF = 0
KH_OFF = 4352
KL_OFF = 12032
KT_OFF = 19712
YP_OFF = 4352
DEBUG = False
DBG_CH = 5

import os
STAMP = os.environ.get('S_STAMP') == '1'
def gen(a):
    def stamp(k):
        if STAMP:
            a(f"{'s_memrealtime' if os.environ.get('RT')=='1' else 's_memtime'} s[{70+2*k}:{71+2*k}]")
            a('s_waitcnt lgkmcnt(0)')
    stamp(0)
    a(f"""
    s_load_dwordx2 s[4:5], s[0:1], {KA['u']}
    s_load_dwordx2 s[6:7], s[0:1], {KA['lar']}
    s_load_dwordx2 s[8:9], s[0:1], {KA['aim']}
    s_load_dwordx2 s[10:11], s[0:1], {KA['cre']}
    s_load_dwordx2 s[12:13], s[0:1], {KA['cim']}
    s_load_dwordx2 s[14:15], s[0:1], {KA['ldt']}
    s_load_dwordx2 s[50:51], s[0:1], {KA['dsk']}
    s_load_dwordx2 s[52:53], s[0:1], {KA['ws']}
    v_lshrrev_b32 v7, 6, v0
    v_and_b32 v1, 63, v0
    v_and_b32 v2, 15, v1
    v_lshrrev_b32 v3, 4, v1
    v_lshrrev_b32 v4, 5, v1
    v_and_b32 v5, 31, v1
    v_readfirstlane_b32 s3, v7
    s_waitcnt lgkmcnt(0)
    """)
    srd(a, 16, 4, 0, L*D*2)
    srd(a, 20, 6, 0, D*N*2)
    srd(a, 24, 8, 0, D*N*2)
    srd(a, 28, 10, 0, D*N*2)
    srd(a, 32, 12, 0, D*N*2)
    srd(a, 36, 14, 0, D*2)
    srd(a, 40, 50, 0, D*2)
    srd(a, 44, 52, OFF_AT, SZ_AT)
    a("s_lshl_b32 s54, s2, 1")
    a(f"""
    s_lshl_b32 s55, s2, 8
    s_lshl_b32 s56, s3, 6
    s_add_u32 s55, s55, s56
    v_lshlrev_b32 v7, 3, v3
    """)
    for ai, sr in enumerate((20, 24, 28, 32)):
        for s in range(2):
            a(f"buffer_load_dwordx2 v[{16+4*ai+2*s}:{16+4*ai+2*s+1}], v7, s[{sr}:{sr+3}], s55 offen offset:{32*s}")
    a(f"""
    v_mov_b32 v7, s54
    buffer_load_ushort v14, v7, s[36:39], 0 offen
    buffer_load_ushort v15, v7, s[40:43], 0 offen
    v_mul_u32_u24 v6, 1280, v0
    """)
    for i in range(8):
        a(f"s_add_u32 s55, s54, {i*256*1280}")
        a(f"buffer_load_ushort v{114+i}, v6, s[16:19], s55 offen")
    a(f"""
    v_mov_b32 v92, 0
    v_mov_b32 v93, 0
    v_mov_b32 v94, 0
    v_mov_b32 v95, 0
    v_lshlrev_b32 v7, 4, v0
    ds_write_b128 v7, v[92:95] offset:{KH_OFF}
    ds_write_b128 v7, v[92:95] offset:{KL_OFF}
    v_cmp_gt_u32 vcc, 4, v0
    s_and_saveexec_b64 s[58:59], vcc
    ds_write_b128 v7, v[92:95] offset:{R_OFF+4096}
    s_mov_b64 exec, s[58:59]
    s_mov_b32 s60, 0x3fb8aa3b       ; log2(e)
    s_mov_b32 s61, 0xbfb8aa3b       ; -log2(e)
    s_mov_b32 s62, 0x3e22f983       ; 1/(2pi)
    s_mov_b32 s63, 0x7fff
    s_mov_b32 s64, 384
    s_mov_b32 s65, 256
    s_waitcnt vmcnt(8)
    """)
    stamp(1)
    a("""
    v_lshlrev_b32 v14, 16, v14
    v_mul_f32 v14, s60, v14
    v_exp_f32 v14, v14
    v_lshlrev_b32 v15, 16, v15
    v_cvt_pk_bf16_f32 v14, v14, v14
    v_lshlrev_b32 v14, 16, v14
    """)
    for s in range(2):
        for t in range(4):
            k = 4*s + t
            src = lambda ai: 16 + 4*ai + 2*s + t//2
            ext = (lambda dst, r: f"v_lshlrev_b32 v{dst}, 16, v{r}") if t % 2 == 0 else (lambda dst, r: f"v_and_b32 v{dst}, 0xffff0000, v{r}")
            a(ext(92, src(0)))
            a(f"""
            v_mul_f32 v92, s60, v92
            v_exp_f32 v92, v92
            """)
            a(ext(93, src(1)))
            a(ext(94, src(2)))
            a(ext(95, src(3)))
            a(f"""
            v_cvt_pk_bf16_f32 v92, v92, v92
            v_lshlrev_b32 v92, 16, v92
            v_mul_f32 v92, v92, v14
            v_mul_f32 v{32+k}, s61, v92
            v_mul_f32 v93, v93, v14
            v_mul_f32 v{40+k}, s62, v93
            v_mul_f32 v94, v94, v14
            v_add_f32 v{48+k}, v94, v94
            v_mul_f32 v95, v95, v14
            v_add_f32 v{56+k}, v95, v95
            """)
    for r in range(12):
        a(f"v_mov_b32 v{64+r}, 0")
    for T in range(3):
        if T == 0:
            a("v_lshlrev_b32 v112, 4, v2")
            a("v_mov_b32 v113, v2")
        elif T == 1:
            a("""
            v_lshrrev_b32 v112, 1, v2
            v_lshlrev_b32 v112, 6, v112
            v_and_b32 v113, 1, v2
            v_lshl_add_u32 v112, v113, 1, v112
            v_add_u32 v112, 0x100, v112
            v_subrev_u32 v113, 8, v2
            v_lshlrev_b32 v113, 6, v113
            v_add_u32 v113, 0x200, v113
            v_cmp_gt_u32 vcc, 8, v2
            s_nop 1
            v_cndmask_b32 v112, v113, v112, vcc
            v_lshlrev_b32 v113, 2, v2
            """)
        else:
            a("""
            v_lshlrev_b32 v112, 7, v2
            v_add_u32 v112, 0x400, v112
            v_lshlrev_b32 v113, 3, v2
            """)
        a("v_cvt_f32_u32 v112, v112")
        a("v_cvt_f32_u32 v113, v113")
        for s in range(2):
            for t in range(4):
                k = 4*s + t
                a(f"""
                v_mul_f32 v92, v{32+k}, v112
                v_mul_f32 v93, v{40+k}, v112
                v_mul_f32 v96, v{32+k}, v113
                v_mul_f32 v97, v{40+k}, v113
                v_exp_f32 v92, v92
                v_fract_f32 v93, v93
                v_exp_f32 v96, v96
                v_fract_f32 v97, v97
                v_cos_f32 v94, v93
                v_sin_f32 v95, v93
                v_cos_f32 v98, v97
                v_sin_f32 v99, v97
                s_nop 0
                v_mul_f32 v94, v92, v94
                v_mul_f32 v95, v92, v95
                v_mul_f32 v98, v96, v98
                v_mul_f32 v99, v96, v99
                v_mul_f32 v100, v{48+k}, v94
                v_mul_f32 v101, v{48+k}, v95
                v_fma_f32 v100, -v{56+k}, v95, v100
                v_fma_f32 v101, v{56+k}, v94, v101
                v_sub_f32 v101, 0, v101
                v_cvt_pk_bf16_f32 v{76+t}, v100, v101
                v_cvt_pk_bf16_f32 v{84+t}, v98, v99
                v_lshlrev_b32 v102, 16, v{76+t}
                v_and_b32 v103, 0xffff0000, v{76+t}
                v_lshlrev_b32 v104, 16, v{84+t}
                v_and_b32 v105, 0xffff0000, v{84+t}
                v_sub_f32 v100, v100, v102
                v_sub_f32 v101, v101, v103
                v_sub_f32 v98, v98, v104
                v_sub_f32 v99, v99, v105
                v_cvt_pk_bf16_f32 v{80+t}, v100, v101
                v_cvt_pk_bf16_f32 v{88+t}, v98, v99
                """)
            ac = 64 + 4*T
            a("s_nop 1")
            a(f"v_mfma_f32_16x16x32_bf16 v[{ac}:{ac+3}], v[76:79], v[84:87], v[{ac}:{ac+3}]")
            a(f"v_mfma_f32_16x16x32_bf16 v[{ac}:{ac+3}], v[76:79], v[88:91], v[{ac}:{ac+3}]")
            a(f"v_mfma_f32_16x16x32_bf16 v[{ac}:{ac+3}], v[80:83], v[84:87], v[{ac}:{ac+3}]")
    stamp(2)
    a(f"""
    v_lshlrev_b32 v92, 6, v3
    v_add_u32 v92, v92, v2
    v_lshlrev_b32 v92, 4, v92
    s_lshl_b32 s55, s3, 2
    v_add_u32 v92, s55, v92
    s_nop 7
    s_nop 3
    """)
    for T in range(3):
        for r in range(4):
            a(f"ds_write_b32 v92, v{64+4*T+r} offset:{KT_OFF + T*4096 + r*256}")
    a("v_lshlrev_b32 v7, 1, v0")
    a(f"v_sub_u32 v7, {R_OFF + 4094}, v7")
    a("s_waitcnt vmcnt(0)")
    for i in range(8):
        a(f"v_subrev_u32 v93, {512*i}, v7")
        a(f"ds_write_b16 v93, v{114+i}")
    a("s_waitcnt lgkmcnt(0)")
    a("s_barrier")
    stamp(3)
    for e in range(8):
        a(f"""
        v_lshlrev_b32 v92, 3, v0
        v_add_u32 v92, {e}, v92
        v_cvt_f32_u32 v93, v92
        v_bfe_u32 v94, v93, 16, 1
        v_add3_u32 v93, v93, v94, s63
        v_lshrrev_b32 v94, 23, v93
        v_bfe_u32 v95, v93, 16, 7
        ; case E>=136
        v_subrev_u32 v96, 136, v94
        v_lshlrev_b32 v96, 7, v96
        v_add3_u32 v96, v96, v95, s64
        ; case E==135
        v_and_b32 v97, 96, v95
        v_and_b32 v98, 1, v95
        v_lshl_add_u32 v97, v98, 4, v97
        v_bfe_u32 v98, v95, 1, 4
        v_add3_u32 v97, v97, v98, s65
        v_cmp_eq_u32 vcc, 135, v94
        s_nop 1
        v_cndmask_b32 v96, v96, v97, vcc
        v_cmp_gt_u32 vcc, 135, v94
        s_nop 1
        v_cndmask_b32 v96, v96, v92, vcc
        v_lshlrev_b32 v96, 4, v96
        ds_read_b128 v[{16+4*e}:{16+4*e+3}], v96 offset:{KT_OFF}
        """)
    a("s_waitcnt lgkmcnt(0)")
    for e in range(8):
        b = 16 + 4*e
        a(f"v_add_f32 v{b}, v{b}, v{b+1}")
        a(f"v_add_f32 v{b+2}, v{b+2}, v{b+3}")
        a(f"v_add_f32 v{b}, v{b}, v{b+2}")
    for e2 in range(4):
        b0 = 16 + 8*e2; b1 = b0 + 4
        a(f"""
        v_cvt_pk_bf16_f32 v{48+e2}, v{b0}, v{b1}
        v_lshlrev_b32 v92, 16, v{48+e2}
        v_and_b32 v93, 0xffff0000, v{48+e2}
        v_sub_f32 v92, v{b0}, v92
        v_sub_f32 v93, v{b1}, v93
        v_cvt_pk_bf16_f32 v{52+e2}, v92, v93
        """)
    a(f"""
    v_lshrrev_b32 v92, 2, v0
    v_mul_u32_u24 v92, 80, v92
    v_and_b32 v93, 3, v0
    v_lshl_add_u32 v92, v93, 4, v92
    ds_write_b128 v92, v[48:51] offset:{KH_OFF + 31*80}
    ds_write_b128 v92, v[52:55] offset:{KL_OFF + 31*80}
    s_waitcnt lgkmcnt(0)
    s_barrier
    """)
    if DEBUG:
        srd(a, 68, 52, 0xE00000, 65536)
        a(f"""
        s_cmp_lg_u32 s2, {DBG_CH}
        s_cbranch_scc1 k1_ssm_nodbg
        v_lshlrev_b32 v92, 4, v0
        """)
        for i in range(8):
            a(f"ds_read_b128 v[100:103], v92 offset:{i*4096}")
            a(f"v_add_u32 v93, {i*4096}, v92")
            a("s_waitcnt lgkmcnt(0)")
            a(f"buffer_store_dwordx4 v[100:103], v93, s[68:71], 0 offen")
            a("s_waitcnt vmcnt(0)")
        a.label("k1_ssm_nodbg")
    stamp(4)
    ACC = 16
    for r in range(32):
        a(f"v_mov_b32 v{ACC+r}, 0")
    a(f"""
    v_lshlrev_b32 v6, 1, v5
    v_sub_u32 v6, {R_OFF + 4094}, v6
    v_lshl_add_u32 v6, v4, 4, v6
    s_lshl_b32 s55, s3, 6
    v_subrev_u32 v6, s55, v6
    v_mul_u32_u24 v7, 80, v5
    v_lshl_add_u32 v7, v4, 4, v7
    v_add_u32 v7, {31*80}, v7
    s_mul_i32 s55, s3, 80
    v_subrev_u32 v7, s55, v7
    """)
    ST = 48
    def afr(st, ks): return ST + 40*st + 4*ks
    def bfr(st, c, part, ks): return ST + 40*st + 8 + 16*c + 8*part + 4*ks
    def reads(dd):
        st = dd % 2
        a(f"v_subrev_u32 v8, {256*dd}, v6")
        a(f"v_subrev_u32 v9, {320*dd}, v7")
        for ks in range(2):
            a(f"ds_read_b128 v[{afr(st,ks)}:{afr(st,ks)+3}], v8 offset:{32*ks}")
        for c in ([0, 1] if dd < 8 else [1]):
            for part in range(2):
                for ks in range(2):
                    off = (KH_OFF if part == 0 else KL_OFF) + 2560*c + 32*ks
                    a(f"ds_read_b128 v[{bfr(st,c,part,ks)}:{bfr(st,c,part,ks)+3}], v9 offset:{off}")
    reads(0)
    for dd in range(16):
        st = dd % 2
        if dd < 15:
            reads(dd + 1)
            a(f"s_waitcnt lgkmcnt({10 if dd + 1 < 8 else 6})")
        else:
            a("s_waitcnt lgkmcnt(0)")
        for c in ([0, 1] if dd < 8 else [1]):
            for part in range(2):
                for ks in range(2):
                    ac = ACC + 16*c
                    a(f"v_mfma_f32_32x32x16_bf16 v[{ac}:{ac+15}], v[{afr(st,ks)}:{afr(st,ks)+3}], v[{bfr(st,c,part,ks)}:{bfr(st,c,part,ks)+3}], v[{ac}:{ac+15}]")
    stamp(5)
    a(f"""
    v_lshlrev_b32 v8, 4, v1
    s_lshl_b32 s55, s3, 13
    v_add_u32 v8, s55, v8
    s_barrier
    s_nop 7
    s_nop 7
    """)
    for c in range(2):
        for k4 in range(4):
            r0 = ACC + 16*c + 4*k4
            a(f"ds_write_b128 v8, v[{r0}:{r0+3}] offset:{YP_OFF + (c*4 + k4)*1024}")
    a(f"""
    s_waitcnt lgkmcnt(0)
    s_barrier
    s_lshr_b32 s55, s3, 1           ; c
    s_and_b32 s56, s3, 1
    s_lshl_b32 s56, s56, 1          ; k4 base
    s_lshl_b32 s57, s55, 2
    s_add_u32 s57, s57, s56         ; c*4 + k4base
    s_lshl_b32 s57, s57, 10
    v_lshlrev_b32 v8, 4, v1
    v_add_u32 v8, s57, v8
    ; l = 32*(32c + jj) + 8*k4 + 4h
    s_lshl_b32 s57, s55, 10
    s_lshl_b32 s58, s56, 3
    s_add_u32 s57, s57, s58
    v_lshlrev_b32 v9, 5, v5
    v_lshl_add_u32 v9, v4, 2, v9
    v_add_u32 v9, s57, v9
    v_lshlrev_b32 v10, 1, v9
    v_sub_u32 v10, {R_OFF + 4088}, v10
    v_subrev_u32 v11, 16, v10
    ds_read_b64 v[60:61], v10
    ds_read_b64 v[62:63], v11
    s_lshl_b32 s57, s2, 12
    v_lshlrev_b32 v12, 1, v9
    v_add_u32 v12, s57, v12
    """)
    for kk in range(2):
        P = 64
        for ww in range(4):
            a(f"ds_read_b128 v[{P+4*ww}:{P+4*ww+3}], v8 offset:{YP_OFF + ww*8192 + kk*1024}")
        a("s_waitcnt lgkmcnt(0)")
        for r in range(4):
            a(f"v_add_f32 v{P+r}, v{P+r}, v{P+4+r}")
            a(f"v_add_f32 v{P+8+r}, v{P+8+r}, v{P+12+r}")
        for r in range(4):
            a(f"v_add_f32 v{P+r}, v{P+r}, v{P+8+r}")
        ur = 60 + 2*kk
        a(f"""
        v_cvt_pk_bf16_f32 v80, v{P}, v{P+1}
        v_cvt_pk_bf16_f32 v81, v{P+2}, v{P+3}
        v_lshlrev_b32 v{P}, 16, v80
        v_and_b32 v{P+1}, 0xffff0000, v80
        v_lshlrev_b32 v{P+2}, 16, v81
        v_and_b32 v{P+3}, 0xffff0000, v81
        v_and_b32 v82, 0xffff0000, v{ur+1}
        v_lshlrev_b32 v83, 16, v{ur+1}
        v_and_b32 v84, 0xffff0000, v{ur}
        v_lshlrev_b32 v85, 16, v{ur}
        v_mul_f32 v82, v82, v15
        v_mul_f32 v83, v83, v15
        v_mul_f32 v84, v84, v15
        v_mul_f32 v85, v85, v15
        v_cvt_pk_bf16_f32 v80, v82, v83
        v_cvt_pk_bf16_f32 v81, v84, v85
        v_lshlrev_b32 v82, 16, v80
        v_and_b32 v83, 0xffff0000, v80
        v_lshlrev_b32 v84, 16, v81
        v_and_b32 v85, 0xffff0000, v81
        v_add_f32 v82, v82, v{P}
        v_add_f32 v83, v83, v{P+1}
        v_add_f32 v84, v84, v{P+2}
        v_add_f32 v85, v85, v{P+3}
        v_cvt_pk_bf16_f32 v80, v82, v83
        v_cvt_pk_bf16_f32 v81, v84, v85
        buffer_store_dwordx2 v[80:81], v12, s[44:47], 0 offen offset:{16*kk}
        """)
    a("s_waitcnt vmcnt(0)")
    if STAMP:
        stamp(6)
        srd(a, 88, 52, 0xE00000, 1 << 20)
        a("""
        v_cmp_eq_u32 vcc, 0, v1
        s_and_saveexec_b64 s[58:59], vcc
        s_lshl_b32 s55, s2, 2
        s_add_u32 s55, s55, s3
        s_lshl_b32 s55, s55, 6
        v_mov_b32 v92, s55
        """)
        for k in range(7):
            a(f"v_mov_b32 v94, s{70+2*k}")
            a(f"v_mov_b32 v95, s{71+2*k}")
            a(f"buffer_store_dwordx2 v[94:95], v92, s[88:91], 0 offen offset:{8*k}")
        a("s_waitcnt vmcnt(0)")
    a("s_endpgm")
```
